```python
import torch

def _softmax(x, axis=-1):
    return torch.softmax(x, dim=axis)
def _gelu(x):
    return torch.nn.functional.gelu(x, approximate="tanh")
def _silu(x):
    return torch.nn.functional.silu(x)
def _sigmoid(x):
    return torch.sigmoid(x)
def _layernorm(x, axis=-1, eps=1e-5):
    m = x.mean(dim=axis, keepdim=True)
    v = x.var(dim=axis, keepdim=True, unbiased=False)
    return (x - m) / torch.sqrt(v + eps)
def _scatter_add(tgt, idx, src, axis=0):
    return tgt.clone().index_add_(axis, idx, src)
def _segment_sum(src, seg, n):
    out = torch.zeros((n,) + src.shape[1:], dtype=src.dtype)
    return out.index_add_(0, seg, src)
def _pad(x, pw):
    flat = tuple(v for pair in reversed(pw) for v in pair)
    return torch.nn.functional.pad(x, flat)

kernel_name = 'gated_mix__sliding_block__mixer_channel_mlp__prompt'

def setup_inputs():

    _w = (lambda a: (lambda t: t.to(torch.bfloat16) if t.is_floating_point() else t)(torch.as_tensor(a)))
    def _A_setup():
        B, S, D = 1, 2048, 512
        return {
            "x": _w((lambda *s: torch.randn(*s, dtype=torch.bfloat16) * 0.05)(B, S, D)),
            "wqkv": _w((lambda *s: torch.randn(*s, dtype=torch.bfloat16) * 0.8)(D, 3 * D)),
            "wo": _w((lambda *s: torch.randn(*s, dtype=torch.bfloat16) * 0.05)(D, D)),
        }
    _A_in = _A_setup()

    def _B_setup():
        B, S, D, F = 1, 2048, 512, 1376
        return {
            "x": _w((lambda *s: torch.randn(*s, dtype=torch.bfloat16) * 0.05)(B, S, D)),
            "w1": _w((lambda *s: torch.randn(*s, dtype=torch.bfloat16) * 3.2)(D, F) * (D ** -0.5)),
            "b1": _w((lambda *s: torch.randn(*s, dtype=torch.bfloat16) * 1.6)(F)),
            "w2": _w((lambda *s: torch.randn(*s, dtype=torch.bfloat16) * 0.2)(F, D) * (F ** -0.5)),
            "b2": _w((lambda *s: torch.randn(*s, dtype=torch.bfloat16) * 0.2)(D)),
        }
    _B_in = _B_setup()

    return {
        "A_x": _A_in["x"],
        "A_wqkv": _A_in["wqkv"],
        "A_wo": _A_in["wo"],
        "B_x": _B_in["x"],
        "B_w1": _B_in["w1"],
        "B_b1": _B_in["b1"],
        "B_w2": _B_in["w2"],
        "B_b2": _B_in["b2"],
        "gate_w": _w((lambda *s: torch.randn(*s, dtype=torch.bfloat16) * 0.05)(512) * 16.0),
    }

def reference(A_x, A_wqkv, A_wo, B_x, B_w1, B_b1, B_w2, B_b2, gate_w):
    def _A_ref(x, wqkv, wo):
        B, S, D = x.shape
        H = 32; Dh = D // H; W = 256
        qkv = (lambda x, *d: x.permute(*d))((x @ wqkv).reshape(B, S, 3, H, Dh), 2, 0, 3, 1, 4)
        q, k, v = qkv[0], qkv[1], qkv[2]
        scores = torch.einsum("bhqd,bhkd->bhqk", q, k) * (Dh ** -0.5)
        idx = torch.arange(S)
        mask = (idx[:, None] - idx[None, :] >= 0) & (idx[:, None] - idx[None, :] < W)
        scores = torch.where(mask[None, None], scores, -1e9)
        p = _softmax(scores, axis=-1)
        o = torch.einsum("bhqk,bhkd->bhqd", p, v)
        return (lambda x, *d: x.permute(*d))(o, 0, 2, 1, 3).reshape(B, S, D) @ wo

    def _B_ref(x, w1, b1, w2, b2):
        y = _layernorm(x, axis=-1)
        h = _gelu(torch.einsum("bsd,df->bsf", y, w1) + b1)
        return torch.einsum("bsf,fd->bsd", h, w2) + b2

    x = A_x
    g = _sigmoid((x * gate_w).sum(-1, keepdims=True))
    a = _A_ref(x, A_wqkv, A_wo)
    b = _B_ref(x, B_w1, B_b1, B_w2, B_b2)
    return g * a + (1 - g) * b
```

```python
import re

TRANS = ("v_exp_", "v_log_", "v_rcp_", "v_rsq_", "v_sqrt_", "v_sin_", "v_cos_")

def regs_of(tok):
    tok = tok.strip()
    tok = re.sub(r"^-|^\||\|$", "", tok)
    m = re.fullmatch(r"abs\((.*)\)", tok)
    if m: tok = m.group(1)
    m = re.fullmatch(r"([vsa])\[(\d+):(\d+)\]", tok)
    if m: return {(m.group(1), i) for i in range(int(m.group(2)), int(m.group(3)) + 1)}
    m = re.fullmatch(r"([vsa])(\d+)", tok)
    if m: return {(m.group(1), int(m.group(2)))}
    if tok in ("vcc", "vcc_lo", "vcc_hi"): return {("s", "vcc")}
    if tok in ("exec", "exec_lo", "exec_hi"): return {("s", "exec")}
    if tok == "m0": return {("s", "m0")}
    return set()

class Ins:
    __slots__ = ("text", "op", "kind", "dst", "src", "srcA", "srcB", "srcC", "states", "passes", "data", "lds", "sdst")
    def __init__(self, text):
        self.text = text
        t = text.split(";")[0].strip()
        parts = t.split(None, 1)
        self.op = op = parts[0]
        rest = parts[1] if len(parts) > 1 else ""
        ops = []
        depth = 0; cur = ""
        for ch in rest:
            if ch == "[": depth += 1
            if ch == "]": depth -= 1
            if ch == "," and depth == 0:
                ops.append(cur.strip()); cur = ""
            else: cur += ch
        if cur.strip(): ops.append(cur.strip())
        if ops:
            last = ops[-1].split()
            mods = last[1:]
            ops[-1] = last[0] if last else ""
        else: mods = []
        self.dst = set(); self.src = set(); self.srcA = set(); self.srcB = set(); self.srcC = set(); self.data = set()
        self.sdst = set()
        self.states = 1; self.passes = 0; self.lds = "lds" in mods
        R = regs_of
        if op == "s_nop":
            self.kind = "nop"; self.states = int(ops[0], 0) + 1
        elif op.startswith("v_mfma"):
            self.kind = "mfma"; self.dst = R(ops[0]); self.srcA = R(ops[1]); self.srcB = R(ops[2]); self.srcC = R(ops[3])
            self.src = self.srcA | self.srcB | self.srcC
            self.passes = 8 if "32x32x16" in op else 4
        elif op.startswith("v_"):
            self.kind = "valu"
            self.dst = R(ops[0]); rest_ops = ops[1:]
            if op.startswith(("v_add_co", "v_addc_co", "v_sub_co", "v_subb_co", "v_subrev_co")):
                self.dst |= R(ops[1]); rest_ops = ops[2:]
            for o in rest_ops: self.src |= R(o)
            if op.startswith(("v_fmac", "v_dot2c", "v_permlane")): self.src |= R(ops[0])
            if op.startswith("v_permlane") and "swap" in op: self.dst |= R(ops[1])
            if op.startswith("v_cmpx"): self.dst |= {("s", "exec")}
            self.sdst = {r for r in self.dst if r[0] == "s"}
        elif op.startswith("ds_"):
            self.kind = "ds"
            if op.startswith(("ds_read", "ds_bpermute", "ds_permute", "ds_swizzle")):
                self.dst = R(ops[0])
                for o in ops[1:]: self.src |= R(o)
            else:
                for o in ops: self.src |= R(o)
        elif op.startswith(("buffer_", "global_")):
            self.kind = "vmem"
            if op in ("buffer_wbl2", "buffer_inv"): pass
            elif op.startswith("buffer_load") and self.lds:
                for o in ops: self.src |= R(o)
                self.src |= {("s", "m0")}
            elif "load" in op:
                self.dst = R(ops[0])
                for o in ops[1:]: self.src |= R(o)
            else:
                for o in ops: self.src |= R(o)
                self.data = R(ops[0]) if op.startswith("buffer_") else R(ops[1])
        elif op.startswith("s_"):
            self.kind = "salu"
            if op.startswith(("s_cmp", "s_cbranch", "s_branch", "s_waitcnt", "s_barrier", "s_endpgm", "s_sleep", "s_setprio")):
                for o in ops: self.src |= R(o)
            else:
                self.dst = R(ops[0]) if ops else set()
                for o in ops[1:]: self.src |= R(o)
                if "saveexec" in op: self.dst |= {("s", "exec")}
        else:
            raise ValueError("unknown instr: " + text)

def need(prev, cur):
    n = 0
    p, c = prev, cur
    vd = {r for r in p.dst if r[0] in "va"}
    if p.kind == "valu":
        isdot = p.op.startswith("v_dot")
        if c.kind == "mfma" and vd & c.src: n = max(n, 3 if isdot else 2)
        if isdot and c.kind in ("valu", "ds", "vmem"):
            if (vd & c.src) or (vd & c.dst):
                same = c.op == p.op
                if same and vd & c.dst and not (vd & (c.src - c.dst)): pass
                else: n = max(n, 3)
        if p.op.startswith(TRANS) and c.kind == "valu" and not c.op.startswith(TRANS) and vd & c.src: n = max(n, 1)
        if p.op.startswith(TRANS) and c.kind in ("mfma",) and vd & c.src: n = max(n, 2)
        if c.kind == "valu" and c.op.startswith("v_permlane") and vd & c.src: n = max(n, 2)
        if c.kind == "valu" and c.op.startswith(("v_readlane", "v_readfirstlane")) and vd & c.src: n = max(n, 1)
        if c.kind == "valu" and "dpp" in c.text and vd & c.src: n = max(n, 2)
        if p.sdst:
            if c.kind == "valu" and p.sdst & c.src: n = max(n, 2)
            if c.kind == "valu" and c.op.startswith("v_cndmask") and ("s", "vcc") in p.sdst: n = max(n, 2)
            if c.kind == "vmem" and p.sdst & c.src: n = max(n, 5)
            if c.kind == "salu" and p.sdst & c.src: n = max(n, 1)
            if c.op.startswith(("s_cbranch_vcc",)) and ("s", "vcc") in p.sdst: n = max(n, 1)
            if ("s", "exec") in p.sdst and c.kind == "mfma": n = max(n, 4)
    if p.kind == "mfma":
        big = {4: 8, 8: 12}[p.passes]
        if c.kind == "mfma":
            if vd & (c.srcA | c.srcB): n = max(n, big)
            if vd & c.srcC:
                if c.srcC == p.dst and c.passes == p.passes: pass
                else: n = max(n, big - 2)
            elif vd & c.dst: n = max(n, big - 2)
        elif c.kind in ("valu", "ds", "vmem"):
            if vd & c.src or vd & c.dst: n = max(n, big)
        if c.kind == "valu" and p.srcC & c.dst: n = max(n, {4: 3, 8: 7}[p.passes])
    if p.kind == "vmem" and p.data and len(p.data) >= 3:
        if c.kind == "valu" and p.data & c.dst: n = max(n, 2)
        elif p.data & c.dst: n = max(n, 1)
    if p.kind == "salu" and ("s", "m0") in p.dst and c.kind == "vmem" and c.lds: n = max(n, 1)
    return n

class Asm:
    def __init__(self):
        self.out = []
        self.nvm = 0
        self.nlg = 0
        self.uid = 0
    def raw(self, s): self.out.append(s)
    def c(self, s): self.out.append("    ; " + s)
    def label(self, name): self.out.append(name + ":")
    def newlabel(self, p="L"):
        self.uid += 1; return f"{p}_{self.uid}"
    def __call__(self, text, count=True):
        for line in text.strip().split("\n"):
            line = line.strip()
            if not line: continue
            ins = Ins(line)
            self.out.append(ins)
            if count:
                if ins.kind == "vmem": self.nvm += 1
                if ins.kind == "ds": self.nlg += 1
        return None
    def vm(self, text):
        self(text); return self.nvm - 1
    def ds(self, text):
        self(text); return self.nlg - 1
    def wait(self, vm=None, lg=None):
        p = []
        if vm is not None:
            n = self.nvm - 1 - vm
            assert n >= 0
            p.append(f"vmcnt({min(n, 63)})")
        if lg is not None:
            n = self.nlg - 1 - lg
            assert n >= 0
            p.append(f"lgkmcnt({min(n, 15)})")
        self("s_waitcnt " + " ".join(p))
    def save(self):
        self.uid += 1; self.out.append(("SAVE", self.uid)); return self.uid
    def restore(self, k): self.out.append(("RESTORE", k))
    def merge(self, k): self.out.append(("MERGE", k))
    def finish(self):
        res = []
        hists = [[]]
        saved = {}
        pads = 0
        for o in self.out:
            if isinstance(o, tuple):
                if o[0] == "SAVE": saved[o[1]] = [list(h) for h in hists]
                elif o[0] == "RESTORE": hists = [list(h) for h in saved[o[1]]]
                else: hists = hists + [list(h) for h in saved[o[1]]]
                continue
            if isinstance(o, str):
                res.append(o); continue
            req = 0
            for hist in hists:
                dist = 0
                for p in reversed(hist):
                    r = need(p, o) - dist
                    if r > req: req = r
                    dist += p.states
                    if dist >= 20: break
            while req > 0:
                k = min(req, 16)
                nop = Ins(f"s_nop {k-1}")
                res.append("    " + nop.text)
                for hist in hists: hist.append(nop)
                req -= k; pads += 1
            res.append("    " + o.text)
            new = []
            for hist in hists:
                hist.append(o)
                hist = hist[-24:]
                if not any(len(hist) == len(h2) and all(x is y for x, y in zip(hist, h2)) for h2 in new): new.append(hist)
            hists = new
        return "\n".join(res) + "\n", pads
```

```python
import sys
from asmlib import *
NAME = "gated_mix__sliding_block__mixer_channel_mlp__prompt_kernel"
HDR = open("gated_mix__sliding_block__mixer_channel_mlp__prompt.s.ref").read().split("; Override launch")[0]

FLAGS = 0
KBUF = 0x10000
VBUF = KBUF + 0x200000
ACT = VBUF + 0x200000
TSB = ACT + 0x800000
WS_SIZE = TSB + 0x80000
LDS_BYTES = 163840
BLK = 8192
MISC = 19 * BLK
GWL = MISC
STL = MISC + 1024
CSL = MISC + 5120
OMGL = MISC + 5120
CSL = MISC + 1024
LOG2E = 1.4426950408889634
import struct
def f2u(f): return struct.unpack("<I", struct.pack("<f", f))[0]
def hx(f): return "0x%08x" % f2u(f)

def gen(debug=False, stop=None):
    a = Asm()
    sW, sT, sS, sR, sC = 4, 5, 6, 7, 8
    sW1k, sW2k, sOX, sOKV, sOPa, sOPb, sPinc = 9, 10, 11, 12, 13, 14, 15
    SX, SQ, SW1, SPB, SW2, SWO, SWS, SOUT, SDBG, STMP = 40, 44, 48, 52, 56, 60, 64, 68, 72, 76
    sKVo0, sKVo1, sHo, sOo, sAct, sOW3, sI0, sSpin, sT2, sT3, sONE = 80, 81, 82, 83, 84, 85, 86, 87, 88, 89, 90
    sTS = 92
    sKq = 91
    sEX = 94
    def srd(b): return f"s[{b}:{b+3}]"
    vL16, vW3, vPa, vPb, vA1, vA2, vB1a, vB1b, vB2a, vB2b, vTS = 1, 2, 3, 4, 5, 7, 8, 9, 10, 11, 12
    vCS = 14
    vS1, vS2, vSG = 16, 17, 18
    vAG = 13
    vXa, vXb, vKV, vAW, vAX = 20, 21, 22, 23, 24
    vA01, vIG, vBaug = 20, 22, 24
    vT = 28
    WB = 32
    ACC0 = 80; ACC1 = 96; ACC2 = 112; XR = 128
    def vr(b, n): return f"v[{b}:{b+n-1}]"
    nts = [0]
    def ts(name=""):
        if not debug: return
        a(f"s_memtime s[{sTS}:{sTS+1}]\ns_waitcnt lgkmcnt(0)")
        a(f"v_writelane_b32 v{vTS}, s{sTS}, {nts[0]}")
        TSN.append(name); nts[0] += 1
    global TSN
    TSN = []

    a.raw(HDR.rstrip())
    a.raw(f"; @launch grid=(256,1,1) block=(512,1,1) lds={LDS_BYTES}")
    a.raw('.amdgcn_target "amdgcn-amd-amdhsa--gfx950"\n.text')
    a.raw(f".globl {NAME}\n.p2align 8\n.type {NAME},@function\n{NAME}:")
    a("s_cmp_ge_u32 s2, 0x100\ns_cbranch_scc1 L_end")
    a("s_load_dwordx16 s[16:31], s[0:1], 0\ns_load_dwordx8 s[32:39], s[0:1], 64")
    a.c("code prefetch into L2: one dword per 128B line")
    a(f"s_getpc_b64 s[{sEX}:{sEX+1}]")
    a("v_lshlrev_b32 v28, 7, v0")
    a("v_min_u32 v28, CODE_LAST, v28")
    a(f"global_load_dword v29, v28, s[{sEX}:{sEX+1}]")
    if debug:
        a(f"v_mov_b32 v{vTS}, 0")
    a("v_lshrrev_b32 v30, 6, v0")
    a("v_and_b32 v0, 63, v0")
    a(f"v_readfirstlane_b32 s{sW}, v30")
    a(f"s_and_b32 s{sT}, s{sW}, 3\ns_lshr_b32 s{sS}, s{sW}, 2\ns_lshr_b32 s{sKq}, s{sW}, 1")
    a(f"s_and_b32 s3, s2, 6\ns_lshl_b32 s3, s3, 1\ns_lshr_b32 s{sR}, s2, 6\ns_add_u32 s{sR}, s{sR}, s3")
    a(f"s_and_b32 s3, s2, 1\ns_lshl_b32 s3, s3, 3\ns_lshr_b32 s{sC}, s2, 3\ns_and_b32 s{sC}, s{sC}, 7\ns_add_u32 s{sC}, s{sC}, s3")
    a(f"s_lshl_b32 s{sW1k}, s{sW}, 10\ns_lshl_b32 s{sW2k}, s{sW}, 11")
    a(f"v_lshlrev_b32 v{vL16}, 4, v0")
    a("v_lshrrev_b32 v40, 3, v0\nv_and_b32 v41, 7, v0\nv_lshrrev_b32 v42, 4, v0")
    a(f"s_lshl_b32 s3, s{sR}, 7\ns_lshl_b32 s{sT2}, s{sW}, 4\ns_add_u32 s3, s3, s{sT2}")
    a(f"v_add_u32 v43, s3, v40\nv_lshlrev_b32 v43, 10, v43\nv_xor_b32 v44, v41, v42\nv_lshl_add_u32 v{vXa}, v44, 4, v43")
    a(f"v_xor_b32 v{vXb}, 64, v{vXa}\nv_add_u32 v{vXb}, {8192-1024}, v{vXb}")
    a("v_and_b32 v45, 1, v42\nv_lshlrev_b32 v45, 2, v45\nv_xor_b32 v45, v45, v41\nv_lshlrev_b32 v45, 4, v45")
    a(f"s_lshl_b32 s3, s{sW}, 3\nv_add_u32 v46, s3, v40")
    a(f"v_mul_u32_u24 v47, 3072, v46\ns_lshl_b32 s3, s{sC}, 7\ns_add_u32 s3, s3, 1024\nv_add3_u32 v{vKV}, v47, v45, s3")
    a(f"s_and_b32 s3, s{sC}, 7\ns_lshl_b32 s3, s3, 7\nv_lshlrev_b32 v47, 10, v46\nv_add3_u32 v{vW3}, v47, v45, s3")
    a("s_waitcnt lgkmcnt(0)")
    def mksrd(b, p, n):
        a(f"s_mov_b32 s{b}, s{p}\ns_mov_b32 s{b+1}, s{p+1}\ns_mov_b32 s{b+2}, {n}\ns_mov_b32 s{b+3}, 0x00020000")
    mksrd(SX, 16, 2048*1024); mksrd(SQ, 18, 512*3072); mksrd(STMP, 32, 1024); mksrd(SWS, 38, WS_SIZE)
    a(f"s_mov_b32 s{sOX}, 0\ns_mov_b32 s{sOKV}, 0")
    a(f"s_or_b32 s3, s2, s{sW}\ns_cmp_lg_u32 s3, 0\ns_cbranch_scc1 L_noclr")
    k = a.save()
    a("v_mov_b32 v48, 0\nv_mov_b32 v49, 0\nv_mov_b32 v50, 0\nv_mov_b32 v51, 0")
    a(f"v_add_u32 v52, 0x1000, v{vL16}")
    for i in range(4): a(f"buffer_store_dwordx4 v[48:51], v{vL16}, {srd(SWS)}, 0 offen offset:{i*1024} sc1", count=False)
    for i in range(2): a(f"buffer_store_dwordx4 v[48:51], v52, {srd(SWS)}, 0 offen offset:{i*1024} sc1", count=False)
    a.label("L_noclr"); a.merge(k)
    a(f"s_mov_b32 m0, {GWL}")
    a(f"buffer_load_dwordx4 v{vL16}, {srd(STMP)}, 0 offen lds")

    tagD = {}
    xslot = {0:0,1:2,2:4,3:6,4:8,5:10,6:0,7:2}
    wslot = {0:12,1:13,2:14,3:15,4:16,5:17,6:18,7:12}
    pslot = {8:4, 9:6, 10:14, 11:8, 12:10, 13:16, 14:0, 15:2}
    def dma_p1(q):
        a(f"s_add_u32 m0, s{sW2k}, {xslot[q]*BLK}")
        a(f"buffer_load_dwordx4 v{vXa}, {srd(SX)}, s{sOX} offen lds")
        a(f"buffer_load_dwordx4 v{vXb}, {srd(SX)}, s{sOX} offen offset:1024 lds")
        a(f"s_add_u32 m0, s{sW1k}, {wslot[q]*BLK}")
        a(f"s_add_u32 s{sOX}, s{sOX}, 128")
        tagD[q] = a.vm(f"buffer_load_dwordx4 v{vKV}, {srd(SQ)}, s{sOKV} offen lds")
        a(f"s_add_u32 s{sOKV}, s{sOKV}, {64*3072}")
    def dma_p2(i):
        a(f"s_add_u32 m0, s{sW2k}, {pslot[i]*BLK}")
        a(f"buffer_load_dwordx4 v{vPa}, {srd(SW1)}, s{sOPa} offen lds")
        a(f"s_add_u32 m0, s{sW2k}, {pslot[i]*BLK+1024}")
        a(f"s_add_u32 s{sOPa}, s{sOPa}, {64*2752}")
        tagD[i] = a.vm(f"buffer_load_dwordx4 v{vPb}, {srd(SPB)}, s{sOPb} offen lds")
        a(f"s_add_u32 s{sOPb}, s{sOPb}, s{sPinc}")
    w3slot = {}
    tagW3 = {}
    def dma_w3(b, slot):
        w3slot[b] = slot
        if b == 22: a(f"s_mov_b32 s{sOW3}, 0")
        a(f"s_add_u32 m0, s{sW1k}, {slot*BLK}")
        tagW3[b] = a.vm(f"buffer_load_dwordx4 v{vW3}, {srd(SW2 if b < 22 else SWO)}, s{sOW3} offen lds")
        a(f"s_add_u32 s{sOW3}, s{sOW3}, {64*1024}")
    for q in range(6): dma_p1(q)
    ts("dma0 issued")

    mksrd(SW1, 24, 512*2752); mksrd(SW2, 28, 1376*1024); mksrd(SWO, 20, 512*1024); mksrd(SOUT, 34, 2048*1024); mksrd(SDBG, 36, 256)
    a(f"s_and_b32 s3, s{sW}, 1\ns_cmp_eq_u32 s3, 1")
    a(f"s_cselect_b32 s{SPB}, s18, s24\ns_cselect_b32 s{SPB+1}, s19, s25")
    a(f"s_cselect_b32 s{SPB+2}, s{SQ+2}, s{SW1+2}\ns_mov_b32 s{SPB+3}, 0x00020000")
    a(f"s_mov_b32 s{sT2}, {64*3072}\ns_mov_b32 s{sT3}, {64*2752}\ns_cselect_b32 s{sPinc}, s{sT2}, s{sT3}")
    a(f"s_mov_b32 s{sOPa}, 0\ns_mov_b32 s{sOPb}, 0\ns_mov_b32 s{sOW3}, 0\ns_mov_b32 s{sONE}, 0x3f803f80")
    def w1off(dst, e):
        a(f"s_and_b32 s3, s{sW}, 1\ns_lshl_b32 s3, s3, 7\ns_add_u32 s3, s3, {64*e}")
        a(f"v_add_u32 v48, s3, v0")
        a("v_mul_u32_u24 v49, 171, v48\nv_lshrrev_b32 v49, 11, v49")
        a("v_mul_u32_u24 v50, 12, v49\nv_sub_u32 v50, v48, v50")
        a(f"s_lshl_b32 s3, s{sKq}, 4\nv_add_u32 v49, s3, v49")
        a(f"v_mul_u32_u24 v49, 2752, v49\ns_mul_i32 s3, s{sC}, 192\nv_lshlrev_b32 v50, 4, v50\nv_add3_u32 v{dst}, v49, v50, s3")
    w1off(vPa, 0); w1off(vPb, 1)
    a(f"v_lshrrev_b32 v48, 2, v0\ns_lshl_b32 s3, s{sKq}, 4\nv_add_u32 v48, s3, v48\nv_mul_u32_u24 v48, 3072, v48")
    a(f"v_and_b32 v49, 3, v0\nv_lshlrev_b32 v49, 4, v49\ns_lshl_b32 s3, s{sC}, 6\nv_add3_u32 v48, v48, v49, s3")
    a(f"s_and_b32 s3, s{sW}, 1\ns_cmp_eq_u32 s3, 1\ns_cselect_b64 vcc, -1, 0")
    a(f"v_cndmask_b32 v{vPb}, v{vPb}, v48, vcc")
    a("v_lshrrev_b32 v53, 5, v0\nv_and_b32 v54, 1, v42\nv_bfe_u32 v55, v0, 2, 2\nv_and_b32 v56, 3, v0\nv_lshlrev_b32 v56, 3, v56\nv_and_b32 v57, 31, v0")
    a(f"s_lshl_b32 s3, s{sT}, 5\nv_add_u32 v48, s3, v57\nv_lshlrev_b32 v48, 7, v48\nv_bfe_u32 v49, v57, 1, 3\nv_xor_b32 v49, v49, v53")
    for j in range(4):
        a(f"v_xor_b32 v50, {2*j}, v49\nv_lshl_add_u32 v{vAX+j}, v50, 4, v48")
    a("v_lshl_add_u32 v58, v53, 3, v55")
    a(f"v_lshrrev_b32 v49, 1, v55\nv_xor_b32 v49, s{sS}, v49\nv_lshlrev_b32 v49, 6, v49\nv_lshl_add_u32 v49, v54, 5, v49")
    a(f"v_lshlrev_b32 v48, 7, v58\nv_add3_u32 v{vAW}, v48, v49, v56")
    a(f"v_lshlrev_b32 v{vAG}, 4, v53\nv_add_u32 v{vAG}, {GWL}, v{vAG}")
    a(f"v_mul_u32_u24 v48, 192, v58\ns_lshl_b32 s3, s{sS}, 6\ns_add_u32 s3, s3, 64\nv_lshl_add_u32 v49, v54, 5, v56\nv_add3_u32 v{vA2}, v48, v49, s3")
    a(f"v_cmp_eq_u32 vcc, 1, v54")
    for rd in range(2):
        a(f"s_lshl_b32 s3, s{sS}, 5\ns_add_u32 s3, s3, {3072 + rd*256}\nv_lshl_add_u32 v49, v58, 6, v56\nv_add_u32 v49, s3, v49")
        a(f"s_lshl_b32 s3, s{sS}, 5\ns_sub_u32 s3, {32 + rd*768}, s3\nv_add3_u32 v50, v48, v56, s3")
        a(f"v_cndmask_b32 v{vA1+rd}, v49, v50, vcc")
    mksrd(STMP, 26, 2752)
    a("v_mov_b32 v59, 0x40000000")
    a(f"s_mul_i32 s3, s{sC}, 6\ns_sub_u32 s3, s3, s{sS}\ns_lshl_b32 s3, s3, 5")
    a("v_lshl_add_u32 v48, v57, 1, s3\nv_cmp_eq_u32 vcc, 1, v42\nv_cndmask_b32 v48, v59, v48, vcc")
    a(f"buffer_load_ushort v{vB1a}, v48, {srd(STMP)}, 0 offen")
    a(f"s_mul_i32 s3, s{sC}, 3\ns_add_u32 s3, s3, s{sS}\ns_add_u32 s3, s3, 1\ns_lshl_b32 s3, s3, 6")
    a("v_lshl_add_u32 v49, v57, 1, s3\nv_cmp_eq_u32 vcc, 0, v53\nv_cndmask_b32 v49, v59, v49, vcc")
    a(f"buffer_load_ushort v{vB1b}, v49, {srd(STMP)}, 0 offen")
    mksrd(STMP, 30, 1024)
    a(f"s_and_b32 s3, s{sC}, 7\ns_lshl_b32 s3, s3, 7\ns_cmp_eq_u32 s{sKq}, 0\ns_cselect_b32 s3, s3, 0x40000000")
    a("v_lshl_add_u32 v50, v57, 1, s3\nv_cndmask_b32 v50, v59, v50, vcc")
    a(f"buffer_load_ushort v{vB2a}, v50, {srd(STMP)}, 0 offen")
    tagB = a.vm(f"buffer_load_ushort v{vB2b}, v50, {srd(STMP)}, 0 offen offset:64")
    a(f"s_lshl_b32 s{sT2}, s{sR}, 2\ns_add_u32 s{sT2}, s{sT2}, s{sT}")
    a(f"s_lshl_b32 s3, s{sC}, 1\ns_add_u32 s3, s3, s{sS}")
    a(f"s_lshl_b32 s{sT3}, s3, 17")
    a(f"s_add_u32 s{sKVo0}, s{sT3}, {KBUF}")
    a(f"s_cmp_lt_u32 s{sC}, 8\ns_cselect_b32 s{sT3}, 10, 11\ns_lshl_b32 s{sT3}, s{sT2}, s{sT3}\ns_add_u32 s{sKVo0}, s{sKVo0}, s{sT3}")
    a(f"s_cmp_lt_u32 s{sC}, 8\ns_cselect_b32 s{sT3}, 16, 10\ns_lshl_b32 s{sT3}, 1, s{sT3}\ns_add_u32 s{sKVo1}, s{sKVo0}, s{sT3}")
    a(f"s_lshl_b32 s{sT3}, s{sT2}, 17\ns_add_u32 s{sT3}, s{sT3}, {ACT}")
    a(f"s_lshl_b32 s3, s3, 10\ns_add_u32 s{sOo}, s{sT3}, s3\ns_add_u32 s{sOo}, s{sOo}, {96*1024}")
    a(f"s_mul_i32 s3, s{sC}, {6*1024}\ns_add_u32 s{sHo}, s{sT3}, s3")
    a(f"s_sub_i32 s{sI0}, 8, s{sT2}\ns_max_i32 s{sI0}, s{sI0}, 0")
    a(f"v_mov_b32 v{vS1}, 0\nv_mov_b32 v{vS2}, 0\nv_mov_b32 v{vSG}, 0\nv_mov_b32 v{vCS}, 0\nv_mov_b32 v{vCS+1}, 0")
    a(f"s_mov_b32 s{sSpin}, 0x40000")

    win = {}
    def lds(reg, addr):
        cur = win.get(reg, 0)
        if not (0 <= addr - cur <= 65535 - 16):
            new = (addr // 32768) * 32768
            d = new - cur
            if d >= 0: a(f"v_add_u32 v{reg}, {d}, v{reg}")
            else: a(f"v_subrev_u32 v{reg}, {-d}, v{reg}")
            win[reg] = cur = new
        return f"v{reg} offset:{addr-cur}"
    def prewin(reg, lo, hi):
        cur = win.get(reg, 0)
        if not (0 <= lo - cur and hi - cur <= 65535-16):
            new = (lo // 8192) * 8192; d = new - cur
            a(f"v_add_u32 v{reg}, {d}, v{reg}" if d >= 0 else f"v_subrev_u32 v{reg}, {-d}, v{reg}"); win[reg] = new

    issue_after = {
        1: [6], 2: [7], 3: [8], 4: [9, 10], 5: [11], 6: [12, 13], 7: [14], 8: [15]}
    w3_after = {8: [(0,12),(1,13),(2,18)], 11: [(3,14),(4,15)], 13: [(5,10),(6,11)], 14: [(7,16),(8,17)], 15: [(9,0),(10,1)], 16: [(11,2),(12,3)]}
    def stage_head(i, extra_vm=None):
        t = tagD[i] if extra_vm is None else max(tagD[i], extra_vm)
        a.wait(vm=t)
        a("s_barrier")
    def stage_dma(i):
        for g in issue_after.get(i, []):
            (dma_p1 if g < 8 else dma_p2)(g)
        for b, sl in w3_after.get(i, []): dma_w3(b, sl)

    WF = WB
    GF = WB + 16
    for q in range(8):
        stage_head(q)
        if q == 0:
            ts("stage0 landed")
            a(f"s_or_b32 s3, s2, s{sW}\ns_cmp_lg_u32 s3, 0\ns_cbranch_scc1 L_nogo")
            k = a.save()
            a(f"v_mov_b32 v{vT}, 1\nv_mov_b32 v{vT+1}, 0")
            a(f"buffer_store_dword v{vT}, v{vT+1}, {srd(SDBG)}, 0 offen sc1", count=False)
            a.label("L_nogo"); a.merge(k)
        XB = xslot[q]*BLK; WBs = wslot[q]*BLK
        for j in range(4): prewin(vAX+j, XB, XB)
        prewin(vAW, WBs, WBs + 3*2048+512)
        tg = []
        for j in range(4):
            a.ds(f"ds_read_b128 {vr(XR+16*q+4*j,4)}, {lds(vAX+j, XB)}")
            a.ds(f"ds_read_b64_tr_b16 {vr(WF+4*j,2)}, {lds(vAW, WBs+j*2048)}")
            tg.append(a.ds(f"ds_read_b64_tr_b16 {vr(WF+4*j+2,2)}, {lds(vAW, WBs+j*2048+512)}"))
        stage_dma(q)
        lv, lj = a.newlabel("L_v"), a.newlabel("L_j")
        a(f"s_cmp_ge_u32 s{sC}, 8\ns_cbranch_scc1 {lv}")
        k = a.save()
        for j in range(4):
            a.wait(lg=tg[j])
            cin = "0" if (q == 0 and j == 0) else vr(ACC0,16)
            a(f"v_mfma_f32_32x32x16_bf16 {vr(ACC0,16)}, {vr(WF+4*j,4)}, {vr(XR+16*q+4*j,4)}, {cin}")
        a(f"s_branch {lj}")
        k2 = a.save()
        a.restore(k); a.label(lv)
        for j in range(4):
            a.wait(lg=tg[j])
            cin = "0" if (q == 0 and j == 0) else vr(ACC0,16)
            a(f"v_mfma_f32_32x32x16_bf16 {vr(ACC0,16)}, {vr(XR+16*q+4*j,4)}, {vr(WF+4*j,4)}, {cin}")
        a.label(lj); a.merge(k2)
        ls = a.newlabel("L_ns")
        a(f"s_cmp_lg_u32 s{sS}, {q%2}\ns_cbranch_scc1 {ls}")
        k = a.save()
        for j in range(4): a(f"ds_read_b128 {vr(GF+4*j,4)}, v{vAG} offset:{(4*q+j)*32}", count=False)
        for e in range(16):
            x = XR+16*q+e
            a(f"v_dot2c_f32_bf16 v{vS1}, s{sONE}, v{x}\nv_dot2c_f32_bf16 v{vS2}, v{x}, v{x}")
        a("s_waitcnt lgkmcnt(0)")
        for e in range(16): a(f"v_dot2c_f32_bf16 v{vSG}, v{GF+e}, v{XR+16*q+e}")
        a.label(ls); a.merge(k)
    ts("pass1 done")
    KP = WB + 32
    for e in range(8): a(f"v_cvt_pk_bf16_f32 v{KP+e}, v{ACC0+2*e}, v{ACC0+2*e+1}")
    a(f"buffer_store_dwordx4 {vr(KP,4)}, v{vL16}, {srd(SWS)}, s{sKVo0} offen sc1")
    tagKV = a.vm(f"buffer_store_dwordx4 {vr(KP+4,4)}, v{vL16}, {srd(SWS)}, s{sKVo1} offen sc1")
    for e, r in enumerate((vS1, vS2, vSG)):
        a(f"v_mov_b32 v{vT+e}, v{r}")
    for e, r in enumerate((vS1, vS2, vSG)):
        a(f"v_permlane32_swap_b32 v{r}, v{vT+e}")
    for e, r in enumerate((vS1, vS2, vSG)):
        a(f"v_add_f32 v{r}, v{r}, v{vT+e}")
    a(f"v_and_b32 v{vT}, 0x1f0, v{vL16}\ns_lshl_b32 s3, s{sW}, 9\ns_add_u32 s3, s3, {STL}\nv_add_u32 v{vT+1}, s3, v{vT}")
    a(f"ds_write_b128 v{vT+1}, {vr(vS1,4)}")
    a(f"v_xor_b32 v{vT+1}, 0x800, v{vT+1}" if False else f"s_xor_b32 s3, s{sW}, 4\ns_lshl_b32 s3, s3, 9\ns_add_u32 s3, s3, {STL}\nv_add_u32 v{vT+1}, s3, v{vT}")
    a("s_waitcnt lgkmcnt(0)")

    PUB = 10
    def p2_reads(i):
        base = pslot[i]*BLK
        buf = WB + 32*(i % 2)
        for r in (vA1, vA1+1, vA2): prewin(r, base, base + 3*4096 + 768)
        L = []
        for j in range(4):
            L.append(f"ds_read_b64_tr_b16 {vr(buf+8*j,2)}, {lds(vA1, base+j*4096)}")
            L.append(f"ds_read_b64_tr_b16 {vr(buf+8*j+2,2)}, {lds(vA1+1, base+j*4096)}")
            L.append(f"ds_read_b64_tr_b16 {vr(buf+8*j+4,2)}, {lds(vA2, base+j*4096)}")
            L.append(f"ds_read_b64_tr_b16 {vr(buf+8*j+6,2)}, {lds(vA2, base+j*4096+768)}")
        return L
    def p2_mfmas(i):
        q = i - 8; buf = WB + 32*(i % 2); L = []
        for j in range(4):
            first = (q == 0 and j == 0)
            L.append(f"v_mfma_f32_32x32x16_bf16 {vr(ACC1,16)}, {vr(buf+8*j,4)}, {vr(XR+16*q+4*j,4)}, {'0' if first else vr(ACC1,16)}")
            L.append(f"v_mfma_f32_32x32x16_bf16 {vr(ACC2,16)}, {vr(buf+8*j+4,4)}, {vr(XR+16*q+4*j,4)}, {'0' if first else vr(ACC2,16)}")
        return L
    def colsum(i):
        q = i - 8; buf = WB + 32*(i % 2)
        ls = a.newlabel("L_nc")
        a(f"s_cmp_lg_u32 s{sT}, {q%4}\ns_cbranch_scc1 {ls}")
        k = a.save()
        for j in range(4):
            for e in range(4):
                a(f"v_dot2c_f32_bf16 v{vCS}, s{sONE}, v{buf+8*j+e}\nv_dot2c_f32_bf16 v{vCS+1}, s{sONE}, v{buf+8*j+4+e}")
        a.label(ls); a.merge(k)
    def flag_store(phase):
        a(f"s_lshl_b32 s3, s{sR}, 7\ns_lshl_b32 s{sT2}, s{sC}, 2\ns_add_u32 s3, s3, s{sT2}\ns_add_u32 s3, s3, {FLAGS + phase*2048}")
        a(f"v_mov_b32 v{vT+2}, 1\nv_mov_b32 v{vT+3}, s3")
        a(f"buffer_store_dword v{vT+2}, v{vT+3}, {srd(SWS)}, 0 offen sc1", count=False)
    def poll(voff, S, vtmp):
        lp, dn = a.newlabel("L_poll"), a.newlabel("L_polld")
        a.label(lp)
        a(f"buffer_load_dword v{vtmp}, v{voff}, {srd(S)}, 0 offen sc1", count=False)
        a(f"s_waitcnt vmcnt(0)\nv_cmp_ne_u32 vcc, 1, v{vtmp}\ns_cbranch_vccz {dn}")
        a(f"s_sleep 1\ns_sub_u32 s{sSpin}, s{sSpin}, 1\ns_cbranch_scc0 {lp}")
        a(f"s_mov_b32 s{sSpin}, 0")
        a.label(dn)
    for i in range(8, 17):
        if i < 16:
            stage_head(i, extra_vm=tagKV if i == PUB else None)
        else:
            a("s_barrier")
        if i == 8:
            tst = a.ds(f"ds_read_b128 {vr(ACC0,4)}, v{vT+1}")
        if i == PUB:
            lb = a.newlabel("L_nop")
            a(f"s_cmp_lg_u32 s{sW}, 0\ns_cbranch_scc1 {lb}")
            k = a.save()
            a(f"v_mov_b32 v{vT}, 0")
            poll(vT, SDBG, vT+1)
            flag_store(0)
            a.label(lb); a.merge(k)
            ts("kv published")
        if i == 16:
            a(f"s_lshl_b32 s3, s{sS}, 11\ns_add_u32 s3, s3, {CSL}\nv_lshrrev_b32 v{vT}, 1, v{vL16}\nv_add_u32 v{vT}, s3, v{vT}")
            for e in range(4): tcs = a.ds(f"ds_read_b64 {vr(WB+2*e,2)}, v{vT} offset:{e*512}")
        rd = p2_reads(i) if i < 16 else []
        mf = p2_mfmas(i-1) if i > 8 else []
        ri = 0
        if not mf:
            for x in rd: a(x)
            stage_dma(i)
        else:
            for m in range(8):
                a(mf[m])
                for x in rd[2*m:2*m+2]: a(x)
                if m == 0: stage_dma(i)
        if i == 8:
            a.wait(lg=tst)
            a(f"v_add_f32 v{vS1}, v{vS1}, v{ACC0}\nv_add_f32 v{vS2}, v{vS2}, v{ACC0+1}\nv_add_f32 v{vSG}, v{vSG}, v{ACC0+2}")
            m, var, sd, rs, eg, tmp = ACC0+4, ACC0+5, ACC0+6, ACC0+7, ACC0+8, ACC0+9
            a(f"v_mul_f32 v{m}, {hx(-1.0/512)}, v{vS1}")
            a(f"v_mul_f32 v{var}, {hx(1.0/512)}, v{vS2}")
            a(f"v_fma_f32 v{var}, -v{m}, v{m}, v{var}")
            a(f"v_max_f32 v{var}, 0, v{var}\nv_add_f32 v{var}, {hx(1e-5)}, v{var}")
            a(f"v_sqrt_f32 v{sd}, v{var}\nv_rsq_f32 v{rs}, v{var}")
            a(f"v_mul_f32 v{eg}, {hx(LOG2E)}, v{vSG}")
            a(f"v_exp_f32 v{tmp}, -v{eg}\nv_exp_f32 v{eg}, v{eg}")
            K0 = -2*0.7978845608028654*LOG2E; K1 = K0*0.044715
            a(f"v_mul_f32 v{vA01}, {hx(K0)}, v{rs}\nv_mul_f32 v{vA01+1}, v{rs}, v{rs}")
            a(f"v_mul_f32 v{vA01+1}, v{vA01+1}, v{rs}\nv_mul_f32 v{vA01+1}, {hx(K1)}, v{vA01+1}")
            a(f"v_add_f32 v{tmp}, 1.0, v{tmp}\nv_min_f32 v{eg}, {hx(1e30)}, v{eg}\nv_add_f32 v{eg}, 1.0, v{eg}")
            a(f"v_rcp_f32 v{vIG+1}, v{tmp}")
            a(f"v_mul_f32 v{vIG}, v{sd}, v{eg}")
            a(f"v_rcp_f32 v{eg}, v{eg}")
            def hilo(dst, x, t0):
                a(f"v_cvt_pk_bf16_f32 v{t0}, v{x}, v{x}\nv_and_b32 v{t0}, 0xffff0000, v{t0}\nv_sub_f32 v{t0+1}, v{x}, v{t0}\nv_cvt_pk_bf16_f32 v{dst}, v{t0}, v{t0+1}")
            hilo(vBaug, m, ACC0+10); hilo(vBaug+2, sd, ACC0+12)
            a(f"v_mov_b32 v{vBaug+1}, v{vBaug}\nv_mov_b32 v{vBaug+3}, 0")
            a(f"v_lshrrev_b32 v{tmp}, 2, v{vL16}\nv_and_b32 v{tmp}, 0x7c, v{tmp}\ns_lshl_b32 s3, s{sT}, 7\ns_add_u32 s3, s3, {OMGL}\nv_add_u32 v{tmp}, s3, v{tmp}")
            a(f"ds_write_b32 v{tmp}, v{eg}")
        if i < 16:
            a("s_waitcnt lgkmcnt(0)")
            colsum(i)
        if i == 15:
            a(f"s_lshl_b32 s3, s{sW}, 9\ns_add_u32 s3, s3, {CSL}\nv_lshrrev_b32 v{vT}, 1, v{vL16}\nv_add_u32 v{vT}, s3, v{vT}")
            a(f"ds_write_b64 v{vT}, {vr(vCS,2)}\ns_waitcnt lgkmcnt(0)")
    KL = 4*BLK; VL = KL + 24576
    a(f"v_bfe_u32 v{vT}, v0, 1, 2\nv_min_u32 v{vT}, 2, v{vT}\nv_sub_u32 v{vT}, s{sR}, v{vT}\nv_max_i32 v{vT}, 0, v{vT}\nv_lshlrev_b32 v{vT}, 7, v{vT}")
    a(f"v_and_b32 v{vT+1}, 1, v0\nv_lshl_add_u32 v{vT}, v{vT+1}, 5, v{vT}\ns_lshr_b32 s3, s{sC}, 1\ns_lshl_b32 s3, s3, 2\nv_add_u32 v{vT}, s3, v{vT}")
    poll(vT, SWS, vT+1)
    ts("kv flags ok")
    a(f"s_lshl_b32 s3, s{sC}, 17\ns_add_u32 s{sT2}, s3, {KBUF}\ns_lshl_b32 s{sT3}, s{sKq}, 16\ns_add_u32 s{sT2}, s{sT2}, s{sT3}")
    a(f"s_add_u32 s3, s3, {VBUF}\ns_cmp_lt_u32 s{sW}, 4\ns_cselect_b32 s{sKVo0}, s{sT2}, s3")
    a(f"s_and_b32 s3, s{sW}, 1\ns_mul_i32 s3, s3, 6\ns_lshl_b32 s{sT2}, s{sR}, 2\ns_add_u32 s3, s3, s{sT2}\ns_sub_u32 s3, s3, 8")
    a(f"s_mul_i32 s{sT3}, s{sT}, 6\ns_lshl_b32 s{sT2}, s{sR}, 3\ns_add_u32 s{sT3}, s{sT3}, s{sT2}\ns_sub_u32 s{sT3}, s{sT3}, 16")
    a(f"s_cmp_lt_u32 s{sW}, 4\ns_cselect_b32 s{sKVo1}, s3, s{sT3}")
    a(f"s_mul_i32 s{sT3}, s{sW}, 6144")
    for e in range(6):
        a(f"s_add_i32 s3, s{sKVo1}, {e}\ns_lshl_b32 s{sT2}, s3, 10\ns_add_u32 s{sT2}, s{sT2}, s{sKVo0}\ns_cmp_lt_i32 s3, 0\ns_cselect_b32 s{sT2}, 0x40000000, s{sT2}")
        a(f"s_add_u32 m0, s{sT3}, {KL + e*1024}")
        tagKVin = a.vm(f"buffer_load_dwordx4 v{vL16}, {srd(SWS)}, s{sT2} offen sc1 lds")
    a.wait(lg=tcs, vm=tagB)
    a(f"v_pk_add_f32 {vr(WB,2)}, {vr(WB,2)}, {vr(WB+2,2)}\nv_pk_add_f32 {vr(WB+4,2)}, {vr(WB+4,2)}, {vr(WB+6,2)}\nv_pk_add_f32 {vr(WB,2)}, {vr(WB,2)}, {vr(WB+4,2)}")
    a(f"v_and_b32 v{vT}, 16, v0\nv_cmp_ne_u32 vcc, 0, v{vT}\nv_cndmask_b32 v{WB}, 0, v{WB}, vcc")
    AU = WB + 8
    for e, (cs, b1) in enumerate(((WB, vB1a), (WB+1, vB1b))):
        d = AU + 4*e
        a(f"v_cvt_pk_bf16_f32 v{d}, v{cs}, v{cs}\nv_and_b32 v{d+3}, 0xffff0000, v{d}\nv_sub_f32 v{d+3}, v{cs}, v{d+3}\nv_cvt_pk_bf16_f32 v{d+1}, v{d+3}, v{d+3}")
        a(f"v_lshl_or_b32 v{d+2}, v{b1}, 16, v{b1}\nv_mov_b32 v{d+3}, 0")
    a(f"v_mfma_f32_32x32x16_bf16 {vr(ACC1,16)}, {vr(AU,4)}, {vr(vBaug,4)}, {vr(ACC1,16)}")
    a(f"v_mfma_f32_32x32x16_bf16 {vr(ACC2,16)}, {vr(AU+4,4)}, {vr(vBaug,4)}, {vr(ACC2,16)}")
    ts("pass2 done")
    vQ = 24
    QS = 0.25*LOG2E
    a(f"s_mov_b32 s{sT2}, {hx(QS)}\ns_mov_b32 s{sT3}, {hx(QS)}")
    for e in range(4): a(f"v_pk_mul_f32 {vr(ACC1+2*e,2)}, {vr(ACC1+2*e,2)}, s[{sT2}:{sT3}]")
    for e in range(4): a(f"v_cvt_pk_bf16_f32 v{vQ+e}, v{ACC1+2*e}, v{ACC1+2*e+1}")
    G0 = WB + 16
    src = [ACC1+8+2*e for e in range(4)] + [ACC2+2*e for e in range(8)]
    HP = WB + 48
    for gidx in range(3):
        ss = src[4*gidx:4*gidx+4]; tt = [G0+8*gidx+2*e for e in range(4)]
        for s_, t_ in zip(ss, tt): a(f"v_pk_mul_f32 {vr(t_,2)}, {vr(s_,2)}, {vr(s_,2)}")
        for s_, t_ in zip(ss, tt): a(f"v_pk_fma_f32 {vr(t_,2)}, {vr(t_,2)}, {vr(vA01,2)}, {vr(vA01,2)} op_sel:[0,1,0] op_sel_hi:[1,1,0]")
        for s_, t_ in zip(ss, tt): a(f"v_pk_mul_f32 {vr(t_,2)}, {vr(t_,2)}, {vr(s_,2)}")
        for t_ in tt: a(f"v_exp_f32 v{t_}, v{t_}\nv_exp_f32 v{t_+1}, v{t_+1}")
        for t_ in tt: a(f"v_pk_fma_f32 {vr(t_,2)}, {vr(t_,2)}, {vr(vIG,2)}, {vr(vIG,2)} op_sel_hi:[1,0,0]")
        for t_ in tt: a(f"v_rcp_f32 v{t_}, v{t_}\nv_rcp_f32 v{t_+1}, v{t_+1}")
        for s_, t_ in zip(ss, tt): a(f"v_pk_mul_f32 {vr(t_,2)}, {vr(t_,2)}, {vr(s_,2)}")
        for e, t_ in enumerate(tt): a(f"v_cvt_pk_bf16_f32 v{HP+4*gidx+e}, v{t_}, v{t_+1}")
        if gidx == 0:
            a(f"s_lshl_b32 s3, s{sS}, 10\ns_sub_u32 s3, s{sHo}, s3")
            a(f"buffer_store_dwordx4 {vr(HP,4)}, v{vL16}, {srd(SWS)}, s3 offen offset:1024 sc1")
            a(f"s_lshl_b32 s{sT2}, s{sS}, 11\ns_add_u32 s{sT2}, s{sHo}, s{sT2}")
        else:
            tagH = a.vm(f"buffer_store_dwordx4 {vr(HP+4*gidx,4)}, v{vL16}, {srd(SWS)}, s{sT2} offen offset:{1024*(1+gidx)} sc1")
    ts("gelu done")
    KF = 128
    S0 = 164; SA = 180; SB = 196; ZB = 212; OA = 228; VF = 32; PP = 48; PF = 56; PM = 64; vM = 72; vAK = 73; vAV = 74
    for i in range(16):
        m = 0
        for l in range(64):
            if 8*(i//4) + 4*(l//32) + i % 4 <= l % 32: m |= 1 << l
        a(f"s_mov_b32 s{16+2*i}, 0x{m & 0xffffffff:08x}\ns_mov_b32 s{17+2*i}, 0x{m >> 32:08x}")
    a(f"v_mov_b32 v{vT}, 0xffff\nv_mov_b32 v{vT+1}, 0xffff0000")
    for e in range(8):
        a(f"v_cndmask_b32 v{PM+e}, 0, v{vT}, s[{16+4*e}:{17+4*e}]\nv_cndmask_b32 v{vT+2}, 0, v{vT+1}, s[{18+4*e}:{19+4*e}]\nv_or_b32 v{PM+e}, v{PM+e}, v{vT+2}")
    for e in range(16): a(f"v_mov_b32 v{VF+e}, s{sONE}")
    a(f"s_mul_i32 s3, s{sS}, 12288\ns_lshl_b32 s{sT2}, s{sT}, 10\ns_add_u32 s3, s3, s{sT2}\ns_add_u32 s3, s3, {KL}\nv_add_u32 v{vAK}, s3, v{vL16}")
    a(f"s_lshl_b32 s3, s{sT}, 11\ns_lshl_b32 s{sT2}, s{sS}, 8\ns_add_u32 s3, s3, s{sT2}\ns_add_u32 s3, s3, {VL}\nv_and_b32 v{vAV}, 0x2f0, v{vL16}\nv_add_u32 v{vAV}, s3, v{vAV}")
    a(f"s_cmp_gt_u32 s{sI0}, 0\ns_cselect_b32 s3, 0xff800000, 0")
    for e in range(16): a(f"v_mov_b32 v{ZB+e}, s3")
    a.wait(vm=tagH)
    a("s_barrier")
    lb = a.newlabel("L_nop")
    a(f"s_cmp_lg_u32 s{sW}, 0\ns_cbranch_scc1 {lb}")
    k = a.save(); flag_store(1); a.label(lb); a.merge(k)
    ts("h published")
    tk = [a.ds(f"ds_read_b128 {vr(KF+4*i,4)}, v{vAK} offset:{i*1024}") for i in range(9)]
    def zswitch(i, val):
        lz = a.newlabel("L_z")
        a(f"s_cmp_lg_u32 s{sI0}, {i}\ns_cbranch_scc1 {lz}")
        k = a.save()
        for e in range(16): a(f"v_mov_b32 v{ZB+e}, {val}")
        a.label(lz); a.merge(k)
    def sbuf(i): return S0 if i == 0 else (SA if i % 2 else SB)
    def smfma(i, zval):
        if i > 0: zswitch(i, zval)
        a(f"v_mfma_f32_32x32x16_bf16 {vr(sbuf(i),16)}, {vr(KF+4*i,4)}, {vr(vQ,4)}, {vr(ZB,16)}")
    def merge_s():
        for e in range(16): a(f"v_cndmask_b32 v{SB+e}, v{S0+e}, v{SB+e}, s[{16+2*e}:{17+2*e}]")
    a.wait(lg=tk[0]); smfma(0, "0")
    a.wait(lg=tk[1]); smfma(1, "0")
    first = True
    for i in range(1, 9):
        if i < 8:
            a.wait(lg=tk[i+1]); smfma(i+1, "0")
        else: merge_s()
        b = sbuf(i)
        for e in range(8):
            if first: a(f"v_max_f32 v{vM}, v{b}, v{b+1}"); first = False
            else: a(f"v_max3_f32 v{vM}, v{b+2*e}, v{b+2*e+1}, v{vM}")
    a(f"v_mov_b32 v{vT}, v{vM}\nv_permlane32_swap_b32 v{vM}, v{vT}\nv_max_f32 v{vM}, v{vM}, v{vT}\nv_sub_f32 v{vM}, 0, v{vM}")
    a(f"v_mov_b32 v{vT}, 0xff800000\ns_cmp_gt_u32 s{sI0}, 0\ns_cselect_b64 vcc, -1, 0\nv_cndmask_b32 v{vT}, v{vM}, v{vT}, vcc")
    for e in range(16): a(f"v_mov_b32 v{ZB+e}, v{vT}")
    a(f"s_mov_b32 s{sEX}, 0x0000ffff\ns_mov_b32 s{sEX+1}, 0x0000ffff")
    def vread(i, buf):
        a(f"s_mov_b64 exec, s[{sEX}:{sEX+1}]")
        a.ds(f"ds_read_b128 {vr(VF+8*buf,4)}, v{vAV} offset:{i*2048}")
        t_ = a.ds(f"ds_read_b128 {vr(VF+8*buf+4,4)}, v{vAV} offset:{i*2048+1024}")
        a("s_mov_b64 exec, -1")
        return t_
    smfma(0, f"v{vM}"); smfma(1, f"v{vM}")
    tv = {1: vread(1, 1)}
    for i in range(1, 9):
        if i < 8:
            smfma(i+1, f"v{vM}")
            tv[i+1] = vread(i+1, (i+1) % 2)
        else:
            tv[0] = vread(0, 1)
            merge_s()
        b = sbuf(i)
        for e in range(16): a(f"v_exp_f32 v{b+e}, v{b+e}")
        for e in range(8): a(f"v_cvt_pk_bf16_f32 v{PP+e}, v{b+2*e}, v{b+2*e+1}")
        if i == 8:
            for e in range(8): a(f"v_bfi_b32 v{PF+e}, v{PM+e}, 0, v{PP+e}\nv_and_b32 v{PP+e}, v{PM+e}, v{PP+e}")
        a.wait(lg=tv[i])
        vb = VF + 8*(i % 2)
        a(f"v_mfma_f32_32x32x16_bf16 {vr(OA,16)}, {vr(vb,4)}, {vr(PP,4)}, {'0' if i == 1 else vr(OA,16)}")
        a(f"v_mfma_f32_32x32x16_bf16 {vr(OA,16)}, {vr(vb+4,4)}, {vr(PP+4,4)}, {vr(OA,16)}")
        if i == 8:
            a.wait(lg=tv[0])
            a(f"v_mfma_f32_32x32x16_bf16 {vr(OA,16)}, {vr(VF+8,4)}, {vr(PF,4)}, {vr(OA,16)}")
            a(f"v_mfma_f32_32x32x16_bf16 {vr(OA,16)}, {vr(VF+12,4)}, {vr(PF+4,4)}, {vr(OA,16)}")
    a(f"v_rcp_f32 v{vT}, v{OA+8}\nv_mul_f32 v{vT}, v{vT}, v{vIG+1}")
    for e in range(4): a(f"v_pk_mul_f32 {vr(OA+2*e,2)}, {vr(OA+2*e,2)}, {vr(vT,2)} op_sel_hi:[1,0]")
    for e in range(4): a(f"v_cvt_pk_bf16_f32 v{PP+e}, v{OA+2*e}, v{OA+2*e+1}")
    tagO = a.vm(f"buffer_store_dwordx4 {vr(PP,4)}, v{vL16}, {srd(SWS)}, s{sOo} offen sc1")
    ts("attn done")
    a.wait(vm=tagO)
    a("s_barrier")
    lb = a.newlabel("L_nop")
    a(f"s_cmp_lg_u32 s{sW}, 0\ns_cbranch_scc1 {lb}")
    k = a.save(); flag_store(2); a.label(lb); a.merge(k)
    ts("o published")
    vFl = 13
    a(f"v_and_b32 v{vFl}, 15, v0\nv_lshlrev_b32 v{vFl}, 2, v{vFl}\ns_lshl_b32 s3, s{sR}, 7\ns_add_u32 s3, s3, {FLAGS+2048}\nv_add_u32 v{vFl}, s3, v{vFl}")
    poll(vFl, SWS, vT)
    ts("h flags ok")
    a(f"s_lshr_b32 s3, s{sC}, 3\ns_lshl_b32 s3, s3, 1\ns_and_b32 s{sT2}, s{sW}, 1\ns_add_u32 s{sT2}, s{sT2}, s3")
    a(f"s_lshl_b32 s3, s{sR}, 2\ns_add_u32 s3, s3, s{sT2}\ns_lshl_b32 s3, s3, 17\ns_add_u32 s{sAct}, s3, {ACT}")
    a(f"s_lshl_b32 s3, s{sKq}, 10\ns_add_u32 s{sT3}, s{sAct}, s3")
    HF = 128
    tagHF = []
    for b in range(22):
        tagHF.append(a.vm(f"buffer_load_dwordx4 {vr(HF+4*b,4)}, v{vL16}, {srd(SWS)}, s{sT3} offen sc1"))
        a(f"s_add_u32 s{sT3}, s{sT3}, 4096")
    for e in range(6): dma_w3(13+e, 4+e)
    A3 = 96
    vA3 = 14
    W3F = 32
    a(f"v_lshrrev_b32 v{vT}, 5, v0\nv_bfe_u32 v{vT+1}, v0, 2, 2\nv_lshl_add_u32 v{vT}, v{vT}, 2, v{vT+1}\nv_lshlrev_b32 v{vT}, 7, v{vT}")
    a(f"v_lshrrev_b32 v{vT+1}, 1, v{vT+1}\nv_lshl_add_u32 v{vT}, v{vT+1}, 6, v{vT}\nv_bfe_u32 v{vT+1}, v0, 4, 1\nv_lshl_add_u32 v{vT}, v{vT+1}, 5, v{vT}")
    a(f"v_and_b32 v{vT+1}, 3, v0\nv_lshl_add_u32 v{vT}, v{vT+1}, 3, v{vT}\ns_lshl_b32 s3, s{sKq}, 11\nv_add_u32 v{vA3}, s3, v{vT}\nv_xor_b32 v{vA3+1}, 64, v{vA3}")
    win[vA3] = 0; win[vA3+1] = 0
    a(f"v_lshrrev_b32 v{vT}, 2, v{vL16}\nv_and_b32 v{vT}, 0x7c, v{vT}\ns_lshl_b32 s3, s{sT2}, 7\ns_add_u32 s3, s3, {OMGL}\nv_add_u32 v{vT}, s3, v{vT}")
    t_ = a.ds(f"ds_read_b32 v{vT}, v{vT}")
    for e, b2 in enumerate((vB2a, vB2b)):
        d = 64 + 4*e
        a(f"v_lshl_or_b32 v{d}, v{b2}, 16, v{b2}\nv_mov_b32 v{d+1}, 0\nv_mov_b32 v{d+2}, 0\nv_mov_b32 v{d+3}, 0")
    a.wait(lg=t_)
    a(f"v_cvt_pk_bf16_f32 v{vT+1}, v{vT}, v{vT}\nv_and_b32 v{vT+1}, 0xffff0000, v{vT+1}\nv_sub_f32 v{vT+2}, v{vT}, v{vT+1}\nv_cvt_pk_bf16_f32 v72, v{vT+1}, v{vT+2}")
    a("v_mov_b32 v73, 0\nv_mov_b32 v74, 0\nv_mov_b32 v75, 0")
    a(f"v_mfma_f32_32x32x16_bf16 {vr(A3,16)}, v[64:67], v[72:75], 0")
    a(f"v_mfma_f32_32x32x16_bf16 {vr(A3+16,16)}, v[68:71], v[72:75], 0")
    refill = {1: [(19,12),(20,13),(21,18),(22,14)], 2: [(23,15),(24,16)], 3: [(25,17),(26,0),(27,1),(28,2)], 4: [(29,3)]}
    def w3reads(b, off, buf):
        base = w3slot[b]*BLK + off
        for r in (vA3, vA3+1): prewin(r, base, base+1024)
        for ct in range(2):
            a.ds(f"ds_read_b64_tr_b16 {vr(buf+4*ct,2)}, {lds(vA3+ct, base)}")
            t_ = a.ds(f"ds_read_b64_tr_b16 {vr(buf+4*ct+2,2)}, {lds(vA3+ct, base+1024)}")
        return t_
    for g in range(6):
        bs = [b for b in range(4*g, 4*g+4) if b < 22]
        a.wait(vm=max(tagW3[b] for b in bs))
        a("s_barrier")
        for b, sl in refill.get(g, []): dma_w3(b, sl)
        tg = [w3reads(b, 0, W3F + 8*(b % 4)) for b in bs]
        for b, t_ in zip(bs, tg):
            a.wait(vm=tagHF[b], lg=t_)
            if b == 21:
                lk = a.newlabel("L_sk"); a(f"s_cmp_ge_u32 s{sKq}, 2\ns_cbranch_scc1 {lk}"); k = a.save()
            for ct in range(2):
                a(f"v_mfma_f32_32x32x16_bf16 {vr(A3+16*ct,16)}, {vr(W3F+8*(b%4)+4*ct,4)}, {vr(HF+4*b,4)}, {vr(A3+16*ct,16)}")
            if b == 21: a.label(lk); a.merge(k)
    ts("h gemm done")
    RB = 4*BLK
    vD = 64
    a(f"v_and_b32 v{vT}, 31, v0\nv_lshlrev_b32 v{vT+1}, 8, v{vT}\ns_lshl_b32 s3, s{sW}, 13\ns_add_u32 s3, s3, {RB}\nv_add_u32 v{vT+1}, s3, v{vT+1}")
    a(f"v_and_b32 v{vT}, 7, v0\nv_lshrrev_b32 v{vT+2}, 5, v0\nv_xor_b32 v{vT}, v{vT}, v{vT+2}")
    for j in range(4): a(f"v_xor_b32 v{vT+2}, {2*j}, v{vT}\nv_lshl_add_u32 v{vD+j}, v{vT+2}, 4, v{vT+1}")
    a.wait(vm=tagW3[29])
    a("s_barrier")
    ldep = a.newlabel("L_dep")
    a(f"s_cmp_ge_u32 s{sW}, 4\ns_cbranch_scc1 {ldep}")
    k = a.save()
    nvm0, nlg0 = a.nvm, a.nlg
    a(f"v_add_u32 v{vFl}, 2048, v{vFl}")
    poll(vFl, SWS, vT)
    ts("o flags ok")
    a(f"s_lshl_b32 s3, s{sKq}, 11\ns_add_u32 s{sT3}, s{sAct}, s3\ns_add_u32 s{sT3}, s{sT3}, {96*1024}")
    OF = 128
    tagOF = []
    for bb in range(8):
        a(f"buffer_load_dwordx4 {vr(OF+8*bb,4)}, v{vL16}, {srd(SWS)}, s{sT3} offen sc1")
        tagOF.append(a.vm(f"buffer_load_dwordx4 {vr(OF+8*bb+4,4)}, v{vL16}, {srd(SWS)}, s{sT3} offen offset:1024 sc1"))
        a(f"s_add_u32 s{sT3}, s{sT3}, 4096")
    a(f"s_lshl_b32 s3, s{sKq}, 11\nv_add_u32 v{vA3}, s3, v{vA3}\nv_add_u32 v{vA3+1}, s3, v{vA3+1}")
    pend = [w3reads(22, 0, W3F), w3reads(22, 2048, W3F+8)]
    for bb in range(8):
        cur = pend
        if bb < 7:
            o = 16*((bb+1) % 2)
            pend = [w3reads(23+bb, 0, W3F+o), w3reads(23+bb, 2048, W3F+o+8)]
        o = 16*(bb % 2)
        for e in range(2):
            a.wait(vm=tagOF[bb], lg=cur[e])
            for ct in range(2):
                a(f"v_mfma_f32_32x32x16_bf16 {vr(A3+16*ct,16)}, {vr(W3F+o+8*e+4*ct,4)}, {vr(OF+8*bb+4*e,4)}, {vr(A3+16*ct,16)}")
    ts("o gemm done")
    a.label(ldep); a.merge(k)
    for ct in range(2):
        for j in range(4): a(f"ds_write_b128 v{vD+j}, {vr(A3+16*ct+4*j,4)} offset:{128*ct}")
    a(f"v_lshrrev_b32 v{vT}, 3, v0\nv_and_b32 v{vT+1}, 7, v0\nv_lshlrev_b32 v{vT+1}, 1, v{vT+1}\nv_xor_b32 v{vT+1}, v{vT+1}, v{vT}")
    a(f"s_lshl_b32 s3, s{sT}, 11\ns_lshl_b32 s{sT2}, s{sS}, 13\ns_add_u32 s3, s3, s{sT2}\ns_add_u32 s3, s3, {RB}")
    a(f"v_lshlrev_b32 v{vT+2}, 8, v{vT}\nv_lshl_add_u32 v{vT+2}, v{vT+1}, 4, v{vT+2}\nv_add_u32 v{vT+2}, s3, v{vT+2}\nv_xor_b32 v{vT+3}, 16, v{vT+2}")
    a(f"s_lshl_b32 s3, s{sR}, 7\ns_lshr_b32 s{sT2}, s{sC}, 3\ns_lshl_b32 s{sT2}, s{sT2}, 6\ns_add_u32 s3, s3, s{sT2}\ns_lshl_b32 s{sT2}, s{sW}, 3\ns_add_u32 s3, s3, s{sT2}\ns_lshl_b32 s3, s3, 10")
    a(f"s_and_b32 s{sT2}, s{sC}, 7\ns_lshl_b32 s{sT2}, s{sT2}, 7\ns_add_u32 s3, s3, s{sT2}")
    a(f"v_lshlrev_b32 v{vT}, 10, v{vT}\nv_and_b32 v{vT+1}, 0x70, v{vL16}\nv_add_u32 v{vT}, v{vT}, v{vT+1}")
    a("s_waitcnt lgkmcnt(0)\ns_barrier")
    R0 = 128
    for kq in range(4):
        a(f"ds_read_b128 {vr(R0+8*kq,4)}, v{vT+2} offset:{kq*16384}\nds_read_b128 {vr(R0+8*kq+4,4)}, v{vT+3} offset:{kq*16384}")
    a("s_waitcnt lgkmcnt(4)")
    for e in range(4): a(f"v_pk_add_f32 {vr(R0+2*e,2)}, {vr(R0+2*e,2)}, {vr(R0+8+2*e,2)}")
    a("s_waitcnt lgkmcnt(0)")
    for e in range(4): a(f"v_pk_add_f32 {vr(R0+16+2*e,2)}, {vr(R0+16+2*e,2)}, {vr(R0+24+2*e,2)}")
    for e in range(4): a(f"v_pk_add_f32 {vr(R0+2*e,2)}, {vr(R0+2*e,2)}, {vr(R0+16+2*e,2)}")
    for e in range(4): a(f"v_cvt_pk_bf16_f32 v{R0+8+e}, v{R0+2*e}, v{R0+2*e+1}")
    a(f"buffer_store_dwordx4 {vr(R0+8,4)}, v{vT}, {srd(SOUT)}, s3 offen")
    if debug:
        a("s_waitcnt vmcnt(0)")
        ts("end")
        a(f"s_memrealtime s[{sTS}:{sTS+1}]\ns_waitcnt lgkmcnt(0)\nv_writelane_b32 v{vTS}, s{sTS}, 62")
        a(f"v_writelane_b32 v{vTS}, s{sSpin}, 63")
        a(f"s_lshl_b32 s3, s2, 3\ns_add_u32 s3, s3, s{sW}\ns_lshl_b32 s3, s3, 8\ns_add_u32 s3, s3, {TSB}\nv_lshlrev_b32 v{vT}, 2, v0")
        a(f"buffer_store_dword v{vTS}, v{vT}, {srd(SWS)}, s3 offen")
    a.label("L_end")
    a("s_endpgm")
    a.raw("L_code_end:")
    a.raw(f".set CODE_LAST, L_code_end - {NAME} - 64")
    a.raw(f""".section .rodata,"a"
.p2align 6
.amdhsa_kernel {NAME}
  .amdhsa_next_free_vgpr 256
  .amdhsa_next_free_sgpr 102
  .amdhsa_accum_offset 256
  .amdhsa_group_segment_fixed_size 0
  .amdhsa_kernarg_size 96
  .amdhsa_user_sgpr_count 2
  .amdhsa_user_sgpr_kernarg_segment_ptr 1
  .amdhsa_system_sgpr_workgroup_id_x 1
.end_amdhsa_kernel""")
    txt, pads = a.finish()
    return txt, pads

if __name__ == "__main__":
    txt, pads = gen(debug=False)
    open("gated_mix__sliding_block__mixer_channel_mlp__prompt.s", "w").write(txt)
    txt, pads2 = gen(debug=True)
    open("dbg.s", "w").write(txt)
    open("dbg_ts.txt", "w").write("\n".join(TSN))
    print("pads", pads, pads2)
```

```python
import sys
from asmlib import *
NAME = "gated_mix__sliding_block__mixer_channel_mlp__prompt_kernel"
HDR = open("gated_mix__sliding_block__mixer_channel_mlp__prompt.s.ref").read().split("; Override launch")[0]

FLAGS = 0
KBUF = 0x10000
VBUF = KBUF + 0x200000
ACT = VBUF + 0x200000
TSB = ACT + 0x800000
WS_SIZE = TSB + 0x80000
LDS_BYTES = 163840
BLK = 8192
MISC = 19 * BLK
GWL = MISC
STL = MISC + 1024
CSL = MISC + 5120
OMGL = MISC + 5120
CSL = MISC + 1024
LOG2E = 1.4426950408889634
import struct
def f2u(f): return struct.unpack("<I", struct.pack("<f", f))[0]
def hx(f): return "0x%08x" % f2u(f)

def gen(debug=False, stop=None, probe=False):
    a = Asm()
    sW, sT, sS, sR, sC = 4, 5, 6, 7, 8
    sW1k, sW2k, sOX, sOKV, sOPa, sOPb, sPinc = 9, 10, 11, 12, 13, 14, 15
    SX, SQ, SW1, SPB, SW2, SWO, SWS, SOUT, SDBG, STMP = 40, 44, 48, 52, 56, 60, 64, 68, 72, 76
    sKVo0, sKVo1, sHo, sOo, sAct, sOW3, sI0, sSpin, sT2, sT3, sONE = 80, 81, 82, 83, 84, 85, 86, 87, 88, 89, 90
    sTS = 92
    sKq = 91
    sEX = 94
    def srd(b): return f"s[{b}:{b+3}]"
    vL16, vW3, vPa, vPb, vA1, vA2, vB1a, vB1b, vB2a, vB2b, vTS = 1, 2, 3, 4, 5, 7, 8, 9, 10, 11, 12
    vCS = 14
    vS1, vS2, vSG = 16, 17, 18
    vAG = 13
    vXa, vXb, vKV, vAW, vAX = 20, 21, 22, 23, 24
    vA01, vIG, vBaug = 20, 22, 24
    vT = 28
    WB = 32
    ACC0 = 80; ACC1 = 96; ACC2 = 112; XR = 128
    def vr(b, n): return f"v[{b}:{b+n-1}]"
    nts = [0]
    def ts(name=""):
        if not debug: return
        a(f"s_memtime s[{sTS}:{sTS+1}]\ns_waitcnt lgkmcnt(0)")
        a(f"v_writelane_b32 v{vTS}, s{sTS}, {nts[0]}")
        TSN.append(name); nts[0] += 1
    global TSN
    TSN = []

    a.raw(HDR.rstrip())
    a.raw(f"; @launch grid=(256,1,1) block=(512,1,1) lds={LDS_BYTES}")
    a.raw('.amdgcn_target "amdgcn-amd-amdhsa--gfx950"\n.text')
    a.raw(f".globl {NAME}\n.p2align 8\n.type {NAME},@function\n{NAME}:")
    a("s_cmp_ge_u32 s2, 0x100\ns_cbranch_scc1 L_end")
    a("s_load_dwordx16 s[16:31], s[0:1], 0\ns_load_dwordx8 s[32:39], s[0:1], 64")
    a.c("code prefetch into L2: one dword per 128B line")
    a(f"s_getpc_b64 s[{sEX}:{sEX+1}]")
    a("v_lshlrev_b32 v28, 7, v0")
    a("v_min_u32 v28, CODE_LAST, v28")
    a(f"global_load_dword v29, v28, s[{sEX}:{sEX+1}]")
    if debug:
        a(f"v_mov_b32 v{vTS}, 0")
        a(f"s_memrealtime s[{sTS}:{sTS+1}]\ns_waitcnt lgkmcnt(0)\nv_writelane_b32 v{vTS}, s{sTS}, 61")
        ts("start")
    a("v_lshrrev_b32 v30, 6, v0")
    a("v_and_b32 v0, 63, v0")
    a(f"v_readfirstlane_b32 s{sW}, v30")
    a(f"s_and_b32 s{sT}, s{sW}, 3\ns_lshr_b32 s{sS}, s{sW}, 2\ns_lshr_b32 s{sKq}, s{sW}, 1")
    a(f"s_and_b32 s3, s2, 6\ns_lshl_b32 s3, s3, 1\ns_lshr_b32 s{sR}, s2, 6\ns_add_u32 s{sR}, s{sR}, s3")
    a(f"s_and_b32 s3, s2, 1\ns_lshl_b32 s3, s3, 3\ns_lshr_b32 s{sC}, s2, 3\ns_and_b32 s{sC}, s{sC}, 7\ns_add_u32 s{sC}, s{sC}, s3")
    a(f"s_lshl_b32 s{sW1k}, s{sW}, 10\ns_lshl_b32 s{sW2k}, s{sW}, 11")
    a(f"v_lshlrev_b32 v{vL16}, 4, v0")
    a("v_lshrrev_b32 v40, 3, v0\nv_and_b32 v41, 7, v0\nv_lshrrev_b32 v42, 4, v0")
    a(f"s_lshl_b32 s3, s{sR}, 7\ns_lshl_b32 s{sT2}, s{sW}, 4\ns_add_u32 s3, s3, s{sT2}")
    a(f"v_add_u32 v43, s3, v40\nv_lshlrev_b32 v43, 10, v43\nv_xor_b32 v44, v41, v42\nv_lshl_add_u32 v{vXa}, v44, 4, v43")
    a(f"v_xor_b32 v{vXb}, 64, v{vXa}\nv_add_u32 v{vXb}, {8192-1024}, v{vXb}")
    a("v_and_b32 v45, 1, v42\nv_lshlrev_b32 v45, 2, v45\nv_xor_b32 v45, v45, v41\nv_lshlrev_b32 v45, 4, v45")
    a(f"s_lshl_b32 s3, s{sW}, 3\nv_add_u32 v46, s3, v40")
    a(f"v_mul_u32_u24 v47, 3072, v46\ns_lshl_b32 s3, s{sC}, 7\ns_add_u32 s3, s3, 1024\nv_add3_u32 v{vKV}, v47, v45, s3")
    a(f"s_and_b32 s3, s{sC}, 7\ns_lshl_b32 s3, s3, 7\nv_lshlrev_b32 v47, 10, v46\nv_add3_u32 v{vW3}, v47, v45, s3")
    a("s_waitcnt lgkmcnt(0)")
    def mksrd(b, p, n):
        a(f"s_mov_b32 s{b}, s{p}\ns_mov_b32 s{b+1}, s{p+1}\ns_mov_b32 s{b+2}, {n}\ns_mov_b32 s{b+3}, 0x00020000")
    mksrd(SX, 16, 2048*1024); mksrd(SQ, 18, 512*3072); mksrd(STMP, 32, 1024); mksrd(SWS, 38, WS_SIZE)
    a(f"s_mov_b32 s{sOX}, 0\ns_mov_b32 s{sOKV}, 0")
    a(f"s_or_b32 s3, s2, s{sW}\ns_cmp_lg_u32 s3, 0\ns_cbranch_scc1 L_noclr")
    k = a.save()
    a("v_mov_b32 v48, 0\nv_mov_b32 v49, 0\nv_mov_b32 v50, 0\nv_mov_b32 v51, 0")
    a(f"v_add_u32 v52, 0x1000, v{vL16}")
    for i in range(4): a(f"buffer_store_dwordx4 v[48:51], v{vL16}, {srd(SWS)}, 0 offen offset:{i*1024} sc1", count=False)
    for i in range(2): a(f"buffer_store_dwordx4 v[48:51], v52, {srd(SWS)}, 0 offen offset:{i*1024} sc1", count=False)
    a.label("L_noclr"); a.merge(k)
    a(f"s_mov_b32 m0, {GWL}")
    a(f"buffer_load_dwordx4 v{vL16}, {srd(STMP)}, 0 offen lds")

    tagD = {}
    xslot = {0:0,1:2,2:4,3:6,4:8,5:10,6:0,7:2}
    wslot = {0:12,1:13,2:14,3:15,4:16,5:17,6:18,7:12}
    pslot = {8:4, 9:6, 10:14, 11:8, 12:10, 13:16, 14:0, 15:2}
    def dma_p1(q):
        a(f"s_add_u32 m0, s{sW2k}, {xslot[q]*BLK}")
        a(f"buffer_load_dwordx4 v{vXa}, {srd(SX)}, s{sOX} offen lds")
        a(f"buffer_load_dwordx4 v{vXb}, {srd(SX)}, s{sOX} offen offset:1024 lds")
        a(f"s_add_u32 m0, s{sW1k}, {wslot[q]*BLK}")
        a(f"s_add_u32 s{sOX}, s{sOX}, 128")
        tagD[q] = a.vm(f"buffer_load_dwordx4 v{vKV}, {srd(SQ)}, s{sOKV} offen lds")
        a(f"s_add_u32 s{sOKV}, s{sOKV}, {64*3072}")
    def dma_p2(i):
        a(f"s_add_u32 m0, s{sW2k}, {pslot[i]*BLK}")
        a(f"buffer_load_dwordx4 v{vPa}, {srd(SW1)}, s{sOPa} offen lds")
        a(f"s_add_u32 m0, s{sW2k}, {pslot[i]*BLK+1024}")
        a(f"s_add_u32 s{sOPa}, s{sOPa}, {64*2752}")
        tagD[i] = a.vm(f"buffer_load_dwordx4 v{vPb}, {srd(SPB)}, s{sOPb} offen lds")
        a(f"s_add_u32 s{sOPb}, s{sOPb}, s{sPinc}")
    w3slot = {}
    tagW3 = {}
    def dma_w3(b, slot):
        w3slot[b] = slot
        if b == 22: a(f"s_mov_b32 s{sOW3}, 0")
        a(f"s_add_u32 m0, s{sW1k}, {slot*BLK}")
        tagW3[b] = a.vm(f"buffer_load_dwordx4 v{vW3}, {srd(SW2 if b < 22 else SWO)}, s{sOW3} offen lds")
        a(f"s_add_u32 s{sOW3}, s{sOW3}, {64*1024}")
    for q in range(6): dma_p1(q)
    ts("dma0 issued")

    mksrd(SW1, 24, 512*2752); mksrd(SW2, 28, 1376*1024); mksrd(SWO, 20, 512*1024); mksrd(SOUT, 34, 2048*1024); mksrd(SDBG, 36, 256)
    a(f"s_and_b32 s3, s{sW}, 1\ns_cmp_eq_u32 s3, 1")
    a(f"s_cselect_b32 s{SPB}, s18, s24\ns_cselect_b32 s{SPB+1}, s19, s25")
    a(f"s_cselect_b32 s{SPB+2}, s{SQ+2}, s{SW1+2}\ns_mov_b32 s{SPB+3}, 0x00020000")
    a(f"s_mov_b32 s{sT2}, {64*3072}\ns_mov_b32 s{sT3}, {64*2752}\ns_cselect_b32 s{sPinc}, s{sT2}, s{sT3}")
    a(f"s_mov_b32 s{sOPa}, 0\ns_mov_b32 s{sOPb}, 0\ns_mov_b32 s{sOW3}, 0\ns_mov_b32 s{sONE}, 0x3f803f80")
    def w1off(dst, e):
        a(f"s_and_b32 s3, s{sW}, 1\ns_lshl_b32 s3, s3, 7\ns_add_u32 s3, s3, {64*e}")
        a(f"v_add_u32 v48, s3, v0")
        a("v_mul_u32_u24 v49, 171, v48\nv_lshrrev_b32 v49, 11, v49")
        a("v_mul_u32_u24 v50, 12, v49\nv_sub_u32 v50, v48, v50")
        a(f"s_lshl_b32 s3, s{sKq}, 4\nv_add_u32 v49, s3, v49")
        a(f"v_mul_u32_u24 v49, 2752, v49\ns_mul_i32 s3, s{sC}, 192\nv_lshlrev_b32 v50, 4, v50\nv_add3_u32 v{dst}, v49, v50, s3")
    w1off(vPa, 0); w1off(vPb, 1)
    a(f"v_lshrrev_b32 v48, 2, v0\ns_lshl_b32 s3, s{sKq}, 4\nv_add_u32 v48, s3, v48\nv_mul_u32_u24 v48, 3072, v48")
    a(f"v_and_b32 v49, 3, v0\nv_lshlrev_b32 v49, 4, v49\ns_lshl_b32 s3, s{sC}, 6\nv_add3_u32 v48, v48, v49, s3")
    a(f"s_and_b32 s3, s{sW}, 1\ns_cmp_eq_u32 s3, 1\ns_cselect_b64 vcc, -1, 0")
    a(f"v_cndmask_b32 v{vPb}, v{vPb}, v48, vcc")
    a("v_lshrrev_b32 v53, 5, v0\nv_and_b32 v54, 1, v42\nv_bfe_u32 v55, v0, 2, 2\nv_and_b32 v56, 3, v0\nv_lshlrev_b32 v56, 3, v56\nv_and_b32 v57, 31, v0")
    a(f"s_lshl_b32 s3, s{sT}, 5\nv_add_u32 v48, s3, v57\nv_lshlrev_b32 v48, 7, v48\nv_bfe_u32 v49, v57, 1, 3\nv_xor_b32 v49, v49, v53")
    for j in range(4):
        a(f"v_xor_b32 v50, {2*j}, v49\nv_lshl_add_u32 v{vAX+j}, v50, 4, v48")
    a("v_lshl_add_u32 v58, v53, 3, v55")
    a(f"v_lshrrev_b32 v49, 1, v55\nv_xor_b32 v49, s{sS}, v49\nv_lshlrev_b32 v49, 6, v49\nv_lshl_add_u32 v49, v54, 5, v49")
    a(f"v_lshlrev_b32 v48, 7, v58\nv_add3_u32 v{vAW}, v48, v49, v56")
    a(f"v_lshlrev_b32 v{vAG}, 4, v53\nv_add_u32 v{vAG}, {GWL}, v{vAG}")
    a(f"v_mul_u32_u24 v48, 192, v58\ns_lshl_b32 s3, s{sS}, 6\ns_add_u32 s3, s3, 64\nv_lshl_add_u32 v49, v54, 5, v56\nv_add3_u32 v{vA2}, v48, v49, s3")
    a(f"v_cmp_eq_u32 vcc, 1, v54")
    for rd in range(2):
        a(f"s_lshl_b32 s3, s{sS}, 5\ns_add_u32 s3, s3, {3072 + rd*256}\nv_lshl_add_u32 v49, v58, 6, v56\nv_add_u32 v49, s3, v49")
        a(f"s_lshl_b32 s3, s{sS}, 5\ns_sub_u32 s3, {32 + rd*768}, s3\nv_add3_u32 v50, v48, v56, s3")
        a(f"v_cndmask_b32 v{vA1+rd}, v49, v50, vcc")
    mksrd(STMP, 26, 2752)
    a("v_mov_b32 v59, 0x40000000")
    a(f"s_mul_i32 s3, s{sC}, 6\ns_sub_u32 s3, s3, s{sS}\ns_lshl_b32 s3, s3, 5")
    a("v_lshl_add_u32 v48, v57, 1, s3\nv_cmp_eq_u32 vcc, 1, v42\nv_cndmask_b32 v48, v59, v48, vcc")
    a(f"buffer_load_ushort v{vB1a}, v48, {srd(STMP)}, 0 offen")
    a(f"s_mul_i32 s3, s{sC}, 3\ns_add_u32 s3, s3, s{sS}\ns_add_u32 s3, s3, 1\ns_lshl_b32 s3, s3, 6")
    a("v_lshl_add_u32 v49, v57, 1, s3\nv_cmp_eq_u32 vcc, 0, v53\nv_cndmask_b32 v49, v59, v49, vcc")
    a(f"buffer_load_ushort v{vB1b}, v49, {srd(STMP)}, 0 offen")
    mksrd(STMP, 30, 1024)
    a(f"s_and_b32 s3, s{sC}, 7\ns_lshl_b32 s3, s3, 7\ns_cmp_eq_u32 s{sKq}, 0\ns_cselect_b32 s3, s3, 0x40000000")
    a("v_lshl_add_u32 v50, v57, 1, s3\nv_cndmask_b32 v50, v59, v50, vcc")
    a(f"buffer_load_ushort v{vB2a}, v50, {srd(STMP)}, 0 offen")
    tagB = a.vm(f"buffer_load_ushort v{vB2b}, v50, {srd(STMP)}, 0 offen offset:64")
    a(f"s_lshl_b32 s{sT2}, s{sR}, 2\ns_add_u32 s{sT2}, s{sT2}, s{sT}")
    a(f"s_lshl_b32 s3, s{sC}, 1\ns_add_u32 s3, s3, s{sS}")
    a(f"s_lshl_b32 s{sT3}, s3, 17")
    a(f"s_add_u32 s{sKVo0}, s{sT3}, {KBUF}")
    a(f"s_cmp_lt_u32 s{sC}, 8\ns_cselect_b32 s{sT3}, 10, 11\ns_lshl_b32 s{sT3}, s{sT2}, s{sT3}\ns_add_u32 s{sKVo0}, s{sKVo0}, s{sT3}")
    a(f"s_cmp_lt_u32 s{sC}, 8\ns_cselect_b32 s{sT3}, 16, 10\ns_lshl_b32 s{sT3}, 1, s{sT3}\ns_add_u32 s{sKVo1}, s{sKVo0}, s{sT3}")
    a(f"s_lshl_b32 s{sT3}, s{sT2}, 17\ns_add_u32 s{sT3}, s{sT3}, {ACT}")
    a(f"s_lshl_b32 s3, s3, 10\ns_add_u32 s{sOo}, s{sT3}, s3\ns_add_u32 s{sOo}, s{sOo}, {96*1024}")
    a(f"s_mul_i32 s3, s{sC}, {6*1024}\ns_add_u32 s{sHo}, s{sT3}, s3")
    a(f"s_sub_i32 s{sI0}, 8, s{sT2}\ns_max_i32 s{sI0}, s{sI0}, 0")
    a(f"v_mov_b32 v{vS1}, 0\nv_mov_b32 v{vS2}, 0\nv_mov_b32 v{vSG}, 0\nv_mov_b32 v{vCS}, 0\nv_mov_b32 v{vCS+1}, 0")
    a(f"s_mov_b32 s{sSpin}, 0x40000")

    win = {}
    def lds(reg, addr):
        cur = win.get(reg, 0)
        if not (0 <= addr - cur <= 65535 - 16):
            new = (addr // 32768) * 32768
            d = new - cur
            if d >= 0: a(f"v_add_u32 v{reg}, {d}, v{reg}")
            else: a(f"v_subrev_u32 v{reg}, {-d}, v{reg}")
            win[reg] = cur = new
        return f"v{reg} offset:{addr-cur}"
    def prewin(reg, lo, hi):
        cur = win.get(reg, 0)
        if not (0 <= lo - cur and hi - cur <= 65535-16):
            new = (lo // 8192) * 8192; d = new - cur
            a(f"v_add_u32 v{reg}, {d}, v{reg}" if d >= 0 else f"v_subrev_u32 v{reg}, {-d}, v{reg}"); win[reg] = new

    issue_after = {
        1: [6], 2: [7], 3: [8], 4: [9, 10], 5: [11], 6: [12, 13], 7: [14], 8: [15]}
    w3_after = {8: [(0,12),(1,13),(2,18)], 11: [(3,14),(4,15)], 13: [(5,10),(6,11)], 14: [(7,16),(8,17)], 15: [(9,0),(10,1)], 16: [(11,2),(12,3)]}
    def stage_head(i, extra_vm=None):
        t = tagD[i] if extra_vm is None else max(tagD[i], extra_vm)
        ts(f"st{i} pre")
        a.wait(vm=t)
        ts(f"st{i} vm")
        a("s_barrier")
    def stage_dma(i):
        for g in issue_after.get(i, []):
            (dma_p1 if g < 8 else dma_p2)(g)
        for b, sl in w3_after.get(i, []): dma_w3(b, sl)

    WF = WB
    GF = WB + 16
    for q in range(8):
        stage_head(q)
        if q == 0:
            ts("stage0 landed")
            a(f"s_or_b32 s3, s2, s{sW}\ns_cmp_lg_u32 s3, 0\ns_cbranch_scc1 L_nogo")
            k = a.save()
            a(f"v_mov_b32 v{vT}, 1\nv_mov_b32 v{vT+1}, 0")
            a(f"buffer_store_dword v{vT}, v{vT+1}, {srd(SDBG)}, 0 offen sc1", count=False)
            a.label("L_nogo"); a.merge(k)
        XB = xslot[q]*BLK; WBs = wslot[q]*BLK
        for j in range(4): prewin(vAX+j, XB, XB)
        prewin(vAW, WBs, WBs + 3*2048+512)
        tg = []
        for j in range(4):
            a.ds(f"ds_read_b128 {vr(XR+16*q+4*j,4)}, {lds(vAX+j, XB)}")
            a.ds(f"ds_read_b64_tr_b16 {vr(WF+4*j,2)}, {lds(vAW, WBs+j*2048)}")
            tg.append(a.ds(f"ds_read_b64_tr_b16 {vr(WF+4*j+2,2)}, {lds(vAW, WBs+j*2048+512)}"))
        stage_dma(q)
        lv, lj = a.newlabel("L_v"), a.newlabel("L_j")
        a(f"s_cmp_ge_u32 s{sC}, 8\ns_cbranch_scc1 {lv}")
        k = a.save()
        for j in range(4):
            a.wait(lg=tg[j])
            cin = "0" if (q == 0 and j == 0) else vr(ACC0,16)
            a(f"v_mfma_f32_32x32x16_bf16 {vr(ACC0,16)}, {vr(WF+4*j,4)}, {vr(XR+16*q+4*j,4)}, {cin}")
        a(f"s_branch {lj}")
        k2 = a.save()
        a.restore(k); a.label(lv)
        for j in range(4):
            a.wait(lg=tg[j])
            cin = "0" if (q == 0 and j == 0) else vr(ACC0,16)
            a(f"v_mfma_f32_32x32x16_bf16 {vr(ACC0,16)}, {vr(XR+16*q+4*j,4)}, {vr(WF+4*j,4)}, {cin}")
        a.label(lj); a.merge(k2)
        ls = a.newlabel("L_ns")
        a(f"s_cmp_lg_u32 s{sS}, {q%2}\ns_cbranch_scc1 {ls}")
        k = a.save()
        for j in range(4): a(f"ds_read_b128 {vr(GF+4*j,4)}, v{vAG} offset:{(4*q+j)*32}", count=False)
        for e in range(16):
            x = XR+16*q+e
            a(f"v_dot2c_f32_bf16 v{vS1}, s{sONE}, v{x}\nv_dot2c_f32_bf16 v{vS2}, v{x}, v{x}")
        a("s_waitcnt lgkmcnt(0)")
        for e in range(16): a(f"v_dot2c_f32_bf16 v{vSG}, v{GF+e}, v{XR+16*q+e}")
        a.label(ls); a.merge(k)
    ts("pass1 done")
    KP = WB + 32
    for e in range(8): a(f"v_cvt_pk_bf16_f32 v{KP+e}, v{ACC0+2*e}, v{ACC0+2*e+1}")
    a(f"buffer_store_dwordx4 {vr(KP,4)}, v{vL16}, {srd(SWS)}, s{sKVo0} offen sc1")
    tagKV = a.vm(f"buffer_store_dwordx4 {vr(KP+4,4)}, v{vL16}, {srd(SWS)}, s{sKVo1} offen sc1")
    for e, r in enumerate((vS1, vS2, vSG)):
        a(f"v_mov_b32 v{vT+e}, v{r}")
    for e, r in enumerate((vS1, vS2, vSG)):
        a(f"v_permlane32_swap_b32 v{r}, v{vT+e}")
    for e, r in enumerate((vS1, vS2, vSG)):
        a(f"v_add_f32 v{r}, v{r}, v{vT+e}")
    a(f"v_and_b32 v{vT}, 0x1f0, v{vL16}\ns_lshl_b32 s3, s{sW}, 9\ns_add_u32 s3, s3, {STL}\nv_add_u32 v{vT+1}, s3, v{vT}")
    a(f"ds_write_b128 v{vT+1}, {vr(vS1,4)}")
    a(f"v_xor_b32 v{vT+1}, 0x800, v{vT+1}" if False else f"s_xor_b32 s3, s{sW}, 4\ns_lshl_b32 s3, s3, 9\ns_add_u32 s3, s3, {STL}\nv_add_u32 v{vT+1}, s3, v{vT}")
    a("s_waitcnt lgkmcnt(0)")

    PUB = 10
    def p2_reads(i):
        base = pslot[i]*BLK
        buf = WB + 32*(i % 2)
        for r in (vA1, vA1+1, vA2): prewin(r, base, base + 3*4096 + 768)
        L = []
        for j in range(4):
            L.append(f"ds_read_b64_tr_b16 {vr(buf+8*j,2)}, {lds(vA1, base+j*4096)}")
            L.append(f"ds_read_b64_tr_b16 {vr(buf+8*j+2,2)}, {lds(vA1+1, base+j*4096)}")
            L.append(f"ds_read_b64_tr_b16 {vr(buf+8*j+4,2)}, {lds(vA2, base+j*4096)}")
            L.append(f"ds_read_b64_tr_b16 {vr(buf+8*j+6,2)}, {lds(vA2, base+j*4096+768)}")
        return L
    def p2_mfmas(i):
        q = i - 8; buf = WB + 32*(i % 2); L = []
        for j in range(4):
            first = (q == 0 and j == 0)
            L.append(f"v_mfma_f32_32x32x16_bf16 {vr(ACC1,16)}, {vr(buf+8*j,4)}, {vr(XR+16*q+4*j,4)}, {'0' if first else vr(ACC1,16)}")
            L.append(f"v_mfma_f32_32x32x16_bf16 {vr(ACC2,16)}, {vr(buf+8*j+4,4)}, {vr(XR+16*q+4*j,4)}, {'0' if first else vr(ACC2,16)}")
        return L
    def colsum(i):
        q = i - 8; buf = WB + 32*(i % 2)
        ls = a.newlabel("L_nc")
        a(f"s_cmp_lg_u32 s{sT}, {q%4}\ns_cbranch_scc1 {ls}")
        k = a.save()
        for j in range(4):
            for e in range(4):
                a(f"v_dot2c_f32_bf16 v{vCS}, s{sONE}, v{buf+8*j+e}\nv_dot2c_f32_bf16 v{vCS+1}, s{sONE}, v{buf+8*j+4+e}")
        a.label(ls); a.merge(k)
    def flag_store(phase):
        a(f"s_lshl_b32 s3, s{sR}, 7\ns_lshl_b32 s{sT2}, s{sC}, 2\ns_add_u32 s3, s3, s{sT2}\ns_add_u32 s3, s3, {FLAGS + phase*2048}")
        a(f"v_mov_b32 v{vT+2}, 1\nv_mov_b32 v{vT+3}, s3")
        a(f"buffer_store_dword v{vT+2}, v{vT+3}, {srd(SWS)}, 0 offen sc1", count=False)
    def poll(voff, S, vtmp):
        lp, dn = a.newlabel("L_poll"), a.newlabel("L_polld")
        a.label(lp)
        a(f"buffer_load_dword v{vtmp}, v{voff}, {srd(S)}, 0 offen sc1", count=False)
        a(f"s_waitcnt vmcnt(0)\nv_cmp_ne_u32 vcc, 1, v{vtmp}\ns_cbranch_vccz {dn}")
        a(f"s_sleep 1\ns_sub_u32 s{sSpin}, s{sSpin}, 1\ns_cbranch_scc0 {lp}")
        a(f"s_mov_b32 s{sSpin}, 0")
        a.label(dn)
    for i in range(8, 17):
        if i < 16:
            stage_head(i, extra_vm=tagKV if i == PUB else None)
        else:
            a("s_barrier")
        if i == 8:
            tst = a.ds(f"ds_read_b128 {vr(ACC0,4)}, v{vT+1}")
        if i == PUB:
            lb = a.newlabel("L_nop")
            a(f"s_cmp_lg_u32 s{sW}, 0\ns_cbranch_scc1 {lb}")
            k = a.save()
            a(f"v_mov_b32 v{vT}, 0")
            poll(vT, SDBG, vT+1)
            flag_store(0)
            a.label(lb); a.merge(k)
            ts("kv published")
        if i == 16:
            a(f"s_lshl_b32 s3, s{sS}, 11\ns_add_u32 s3, s3, {CSL}\nv_lshrrev_b32 v{vT}, 1, v{vL16}\nv_add_u32 v{vT}, s3, v{vT}")
            for e in range(4): tcs = a.ds(f"ds_read_b64 {vr(WB+2*e,2)}, v{vT} offset:{e*512}")
        rd = p2_reads(i) if i < 16 else []
        mf = p2_mfmas(i-1) if i > 8 else []
        ri = 0
        if not mf:
            for x in rd: a(x)
            stage_dma(i)
        else:
            for m in range(8):
                a(mf[m])
                for x in rd[2*m:2*m+2]: a(x)
                if m == 0: stage_dma(i)
        if i == 8:
            a.wait(lg=tst)
            a(f"v_add_f32 v{vS1}, v{vS1}, v{ACC0}\nv_add_f32 v{vS2}, v{vS2}, v{ACC0+1}\nv_add_f32 v{vSG}, v{vSG}, v{ACC0+2}")
            m, var, sd, rs, eg, tmp = ACC0+4, ACC0+5, ACC0+6, ACC0+7, ACC0+8, ACC0+9
            a(f"v_mul_f32 v{m}, {hx(-1.0/512)}, v{vS1}")
            a(f"v_mul_f32 v{var}, {hx(1.0/512)}, v{vS2}")
            a(f"v_fma_f32 v{var}, -v{m}, v{m}, v{var}")
            a(f"v_max_f32 v{var}, 0, v{var}\nv_add_f32 v{var}, {hx(1e-5)}, v{var}")
            a(f"v_sqrt_f32 v{sd}, v{var}\nv_rsq_f32 v{rs}, v{var}")
            a(f"v_mul_f32 v{eg}, {hx(LOG2E)}, v{vSG}")
            a(f"v_exp_f32 v{tmp}, -v{eg}\nv_exp_f32 v{eg}, v{eg}")
            K0 = -2*0.7978845608028654*LOG2E; K1 = K0*0.044715
            a(f"v_mul_f32 v{vA01}, {hx(K0)}, v{rs}\nv_mul_f32 v{vA01+1}, v{rs}, v{rs}")
            a(f"v_mul_f32 v{vA01+1}, v{vA01+1}, v{rs}\nv_mul_f32 v{vA01+1}, {hx(K1)}, v{vA01+1}")
            a(f"v_add_f32 v{tmp}, 1.0, v{tmp}\nv_min_f32 v{eg}, {hx(1e30)}, v{eg}\nv_add_f32 v{eg}, 1.0, v{eg}")
            a(f"v_rcp_f32 v{vIG+1}, v{tmp}")
            a(f"v_mul_f32 v{vIG}, v{sd}, v{eg}")
            a(f"v_rcp_f32 v{eg}, v{eg}")
            def hilo(dst, x, t0):
                a(f"v_cvt_pk_bf16_f32 v{t0}, v{x}, v{x}\nv_and_b32 v{t0}, 0xffff0000, v{t0}\nv_sub_f32 v{t0+1}, v{x}, v{t0}\nv_cvt_pk_bf16_f32 v{dst}, v{t0}, v{t0+1}")
            hilo(vBaug, m, ACC0+10); hilo(vBaug+2, sd, ACC0+12)
            a(f"v_mov_b32 v{vBaug+1}, v{vBaug}\nv_mov_b32 v{vBaug+3}, 0")
            a(f"v_lshrrev_b32 v{tmp}, 2, v{vL16}\nv_and_b32 v{tmp}, 0x7c, v{tmp}\ns_lshl_b32 s3, s{sT}, 7\ns_add_u32 s3, s3, {OMGL}\nv_add_u32 v{tmp}, s3, v{tmp}")
            a(f"ds_write_b32 v{tmp}, v{eg}")
        if i < 16:
            a("s_waitcnt lgkmcnt(0)")
            colsum(i)
        if i == 15:
            a(f"s_lshl_b32 s3, s{sW}, 9\ns_add_u32 s3, s3, {CSL}\nv_lshrrev_b32 v{vT}, 1, v{vL16}\nv_add_u32 v{vT}, s3, v{vT}")
            a(f"ds_write_b64 v{vT}, {vr(vCS,2)}\ns_waitcnt lgkmcnt(0)")
    KL = 4*BLK; VL = KL + 24576
    a(f"v_bfe_u32 v{vT}, v0, 1, 2\nv_min_u32 v{vT}, 2, v{vT}\nv_sub_u32 v{vT}, s{sR}, v{vT}\nv_max_i32 v{vT}, 0, v{vT}\nv_lshlrev_b32 v{vT}, 7, v{vT}")
    a(f"v_and_b32 v{vT+1}, 1, v0\nv_lshl_add_u32 v{vT}, v{vT+1}, 5, v{vT}\ns_lshr_b32 s3, s{sC}, 1\ns_lshl_b32 s3, s3, 2\nv_add_u32 v{vT}, s3, v{vT}")
    ts("st16 done")
    poll(vT, SWS, vT+1)
    ts("kv flags ok")
    a(f"s_lshl_b32 s3, s{sC}, 17\ns_add_u32 s{sT2}, s3, {KBUF}\ns_lshl_b32 s{sT3}, s{sKq}, 16\ns_add_u32 s{sT2}, s{sT2}, s{sT3}")
    a(f"s_add_u32 s3, s3, {VBUF}\ns_cmp_lt_u32 s{sW}, 4\ns_cselect_b32 s{sKVo0}, s{sT2}, s3")
    a(f"s_and_b32 s3, s{sW}, 1\ns_mul_i32 s3, s3, 6\ns_lshl_b32 s{sT2}, s{sR}, 2\ns_add_u32 s3, s3, s{sT2}\ns_sub_u32 s3, s3, 8")
    a(f"s_mul_i32 s{sT3}, s{sT}, 6\ns_lshl_b32 s{sT2}, s{sR}, 3\ns_add_u32 s{sT3}, s{sT3}, s{sT2}\ns_sub_u32 s{sT3}, s{sT3}, 16")
    a(f"s_cmp_lt_u32 s{sW}, 4\ns_cselect_b32 s{sKVo1}, s3, s{sT3}")
    a(f"s_mul_i32 s{sT3}, s{sW}, 6144")
    for e in range(6):
        a(f"s_add_i32 s3, s{sKVo1}, {e}\ns_lshl_b32 s{sT2}, s3, 10\ns_add_u32 s{sT2}, s{sT2}, s{sKVo0}\ns_cmp_lt_i32 s3, 0\ns_cselect_b32 s{sT2}, 0x40000000, s{sT2}")
        a(f"s_add_u32 m0, s{sT3}, {KL + e*1024}")
        tagKVin = a.vm(f"buffer_load_dwordx4 v{vL16}, {srd(SWS)}, s{sT2} offen sc1 lds")
    a.wait(lg=tcs, vm=tagB)
    a(f"v_pk_add_f32 {vr(WB,2)}, {vr(WB,2)}, {vr(WB+2,2)}\nv_pk_add_f32 {vr(WB+4,2)}, {vr(WB+4,2)}, {vr(WB+6,2)}\nv_pk_add_f32 {vr(WB,2)}, {vr(WB,2)}, {vr(WB+4,2)}")
    a(f"v_and_b32 v{vT}, 16, v0\nv_cmp_ne_u32 vcc, 0, v{vT}\nv_cndmask_b32 v{WB}, 0, v{WB}, vcc")
    AU = WB + 8
    for e, (cs, b1) in enumerate(((WB, vB1a), (WB+1, vB1b))):
        d = AU + 4*e
        a(f"v_cvt_pk_bf16_f32 v{d}, v{cs}, v{cs}\nv_and_b32 v{d+3}, 0xffff0000, v{d}\nv_sub_f32 v{d+3}, v{cs}, v{d+3}\nv_cvt_pk_bf16_f32 v{d+1}, v{d+3}, v{d+3}")
        a(f"v_lshl_or_b32 v{d+2}, v{b1}, 16, v{b1}\nv_mov_b32 v{d+3}, 0")
    a(f"v_mfma_f32_32x32x16_bf16 {vr(ACC1,16)}, {vr(AU,4)}, {vr(vBaug,4)}, {vr(ACC1,16)}")
    a(f"v_mfma_f32_32x32x16_bf16 {vr(ACC2,16)}, {vr(AU+4,4)}, {vr(vBaug,4)}, {vr(ACC2,16)}")
    ts("pass2 done")
    vQ = 24
    QS = 0.25*LOG2E
    a(f"s_mov_b32 s{sT2}, {hx(QS)}\ns_mov_b32 s{sT3}, {hx(QS)}")
    for e in range(4): a(f"v_pk_mul_f32 {vr(ACC1+2*e,2)}, {vr(ACC1+2*e,2)}, s[{sT2}:{sT3}]")
    for e in range(4): a(f"v_cvt_pk_bf16_f32 v{vQ+e}, v{ACC1+2*e}, v{ACC1+2*e+1}")
    G0 = WB + 16
    src = [ACC1+8+2*e for e in range(4)] + [ACC2+2*e for e in range(8)]
    HP = WB + 48
    for gidx in range(3):
        ss = src[4*gidx:4*gidx+4]; tt = [G0+8*gidx+2*e for e in range(4)]
        for s_, t_ in zip(ss, tt): a(f"v_pk_mul_f32 {vr(t_,2)}, {vr(s_,2)}, {vr(s_,2)}")
        for s_, t_ in zip(ss, tt): a(f"v_pk_fma_f32 {vr(t_,2)}, {vr(t_,2)}, {vr(vA01,2)}, {vr(vA01,2)} op_sel:[0,1,0] op_sel_hi:[1,1,0]")
        for s_, t_ in zip(ss, tt): a(f"v_pk_mul_f32 {vr(t_,2)}, {vr(t_,2)}, {vr(s_,2)}")
        for t_ in tt: a(f"v_exp_f32 v{t_}, v{t_}\nv_exp_f32 v{t_+1}, v{t_+1}")
        for t_ in tt: a(f"v_pk_fma_f32 {vr(t_,2)}, {vr(t_,2)}, {vr(vIG,2)}, {vr(vIG,2)} op_sel_hi:[1,0,0]")
        for t_ in tt: a(f"v_rcp_f32 v{t_}, v{t_}\nv_rcp_f32 v{t_+1}, v{t_+1}")
        for s_, t_ in zip(ss, tt): a(f"v_pk_mul_f32 {vr(t_,2)}, {vr(t_,2)}, {vr(s_,2)}")
        for e, t_ in enumerate(tt): a(f"v_cvt_pk_bf16_f32 v{HP+4*gidx+e}, v{t_}, v{t_+1}")
        if gidx == 0:
            a(f"s_lshl_b32 s3, s{sS}, 10\ns_sub_u32 s3, s{sHo}, s3")
            a(f"buffer_store_dwordx4 {vr(HP,4)}, v{vL16}, {srd(SWS)}, s3 offen offset:1024 sc1")
            a(f"s_lshl_b32 s{sT2}, s{sS}, 11\ns_add_u32 s{sT2}, s{sHo}, s{sT2}")
        else:
            tagH = a.vm(f"buffer_store_dwordx4 {vr(HP+4*gidx,4)}, v{vL16}, {srd(SWS)}, s{sT2} offen offset:{1024*(1+gidx)} sc1")
    ts("gelu done")
    KF = 128
    S0 = 164; SA = 180; SB = 196; ZB = 212; OA = 228; VF = 32; PP = 48; PF = 56; PM = 64; vM = 72; vAK = 73; vAV = 74
    for i in range(16):
        m = 0
        for l in range(64):
            if 8*(i//4) + 4*(l//32) + i % 4 <= l % 32: m |= 1 << l
        a(f"s_mov_b32 s{16+2*i}, 0x{m & 0xffffffff:08x}\ns_mov_b32 s{17+2*i}, 0x{m >> 32:08x}")
    a(f"v_mov_b32 v{vT}, 0xffff\nv_mov_b32 v{vT+1}, 0xffff0000")
    for e in range(8):
        a(f"v_cndmask_b32 v{PM+e}, 0, v{vT}, s[{16+4*e}:{17+4*e}]\nv_cndmask_b32 v{vT+2}, 0, v{vT+1}, s[{18+4*e}:{19+4*e}]\nv_or_b32 v{PM+e}, v{PM+e}, v{vT+2}")
    for e in range(16): a(f"v_mov_b32 v{VF+e}, s{sONE}")
    a(f"s_mul_i32 s3, s{sS}, 12288\ns_lshl_b32 s{sT2}, s{sT}, 10\ns_add_u32 s3, s3, s{sT2}\ns_add_u32 s3, s3, {KL}\nv_add_u32 v{vAK}, s3, v{vL16}")
    a(f"s_lshl_b32 s3, s{sT}, 11\ns_lshl_b32 s{sT2}, s{sS}, 8\ns_add_u32 s3, s3, s{sT2}\ns_add_u32 s3, s3, {VL}\nv_and_b32 v{vAV}, 0x2f0, v{vL16}\nv_add_u32 v{vAV}, s3, v{vAV}")
    a(f"s_cmp_gt_u32 s{sI0}, 0\ns_cselect_b32 s3, 0xff800000, 0")
    for e in range(16): a(f"v_mov_b32 v{ZB+e}, s3")
    a.wait(vm=tagH)
    a("s_barrier")
    lb = a.newlabel("L_nop")
    a(f"s_cmp_lg_u32 s{sW}, 0\ns_cbranch_scc1 {lb}")
    k = a.save(); flag_store(1); a.label(lb); a.merge(k)
    ts("h published")
    tk = [a.ds(f"ds_read_b128 {vr(KF+4*i,4)}, v{vAK} offset:{i*1024}") for i in range(9)]
    def zswitch(i, val):
        lz = a.newlabel("L_z")
        a(f"s_cmp_lg_u32 s{sI0}, {i}\ns_cbranch_scc1 {lz}")
        k = a.save()
        for e in range(16): a(f"v_mov_b32 v{ZB+e}, {val}")
        a.label(lz); a.merge(k)
    def sbuf(i): return S0 if i == 0 else (SA if i % 2 else SB)
    def smfma(i, zval):
        if i > 0: zswitch(i, zval)
        a(f"v_mfma_f32_32x32x16_bf16 {vr(sbuf(i),16)}, {vr(KF+4*i,4)}, {vr(vQ,4)}, {vr(ZB,16)}")
    def merge_s():
        for e in range(16): a(f"v_cndmask_b32 v{SB+e}, v{S0+e}, v{SB+e}, s[{16+2*e}:{17+2*e}]")
    a.wait(lg=tk[0]); smfma(0, "0")
    a.wait(lg=tk[1]); smfma(1, "0")
    first = True
    for i in range(1, 9):
        if i < 8:
            a.wait(lg=tk[i+1]); smfma(i+1, "0")
        else: merge_s()
        b = sbuf(i)
        for e in range(8):
            if first: a(f"v_max_f32 v{vM}, v{b}, v{b+1}"); first = False
            else: a(f"v_max3_f32 v{vM}, v{b+2*e}, v{b+2*e+1}, v{vM}")
    a(f"v_mov_b32 v{vT}, v{vM}\nv_permlane32_swap_b32 v{vM}, v{vT}\nv_max_f32 v{vM}, v{vM}, v{vT}\nv_sub_f32 v{vM}, 0, v{vM}")
    a(f"v_mov_b32 v{vT}, 0xff800000\ns_cmp_gt_u32 s{sI0}, 0\ns_cselect_b64 vcc, -1, 0\nv_cndmask_b32 v{vT}, v{vM}, v{vT}, vcc")
    for e in range(16): a(f"v_mov_b32 v{ZB+e}, v{vT}")
    a(f"s_mov_b32 s{sEX}, 0x0000ffff\ns_mov_b32 s{sEX+1}, 0x0000ffff")
    def vread(i, buf):
        a(f"s_mov_b64 exec, s[{sEX}:{sEX+1}]")
        a.ds(f"ds_read_b128 {vr(VF+8*buf,4)}, v{vAV} offset:{i*2048}")
        t_ = a.ds(f"ds_read_b128 {vr(VF+8*buf+4,4)}, v{vAV} offset:{i*2048+1024}")
        a("s_mov_b64 exec, -1")
        return t_
    smfma(0, f"v{vM}"); smfma(1, f"v{vM}")
    tv = {1: vread(1, 1)}
    for i in range(1, 9):
        if i < 8:
            smfma(i+1, f"v{vM}")
            tv[i+1] = vread(i+1, (i+1) % 2)
        else:
            tv[0] = vread(0, 1)
            merge_s()
        b = sbuf(i)
        for e in range(16): a(f"v_exp_f32 v{b+e}, v{b+e}")
        for e in range(8): a(f"v_cvt_pk_bf16_f32 v{PP+e}, v{b+2*e}, v{b+2*e+1}")
        if i == 8:
            for e in range(8): a(f"v_bfi_b32 v{PF+e}, v{PM+e}, 0, v{PP+e}\nv_and_b32 v{PP+e}, v{PM+e}, v{PP+e}")
        a.wait(lg=tv[i])
        vb = VF + 8*(i % 2)
        a(f"v_mfma_f32_32x32x16_bf16 {vr(OA,16)}, {vr(vb,4)}, {vr(PP,4)}, {'0' if i == 1 else vr(OA,16)}")
        a(f"v_mfma_f32_32x32x16_bf16 {vr(OA,16)}, {vr(vb+4,4)}, {vr(PP+4,4)}, {vr(OA,16)}")
        if i == 8:
            a.wait(lg=tv[0])
            a(f"v_mfma_f32_32x32x16_bf16 {vr(OA,16)}, {vr(VF+8,4)}, {vr(PF,4)}, {vr(OA,16)}")
            a(f"v_mfma_f32_32x32x16_bf16 {vr(OA,16)}, {vr(VF+12,4)}, {vr(PF+4,4)}, {vr(OA,16)}")
    a(f"v_rcp_f32 v{vT}, v{OA+8}\nv_mul_f32 v{vT}, v{vT}, v{vIG+1}")
    for e in range(4): a(f"v_pk_mul_f32 {vr(OA+2*e,2)}, {vr(OA+2*e,2)}, {vr(vT,2)} op_sel_hi:[1,0]")
    for e in range(4): a(f"v_cvt_pk_bf16_f32 v{PP+e}, v{OA+2*e}, v{OA+2*e+1}")
    tagO = a.vm(f"buffer_store_dwordx4 {vr(PP,4)}, v{vL16}, {srd(SWS)}, s{sOo} offen sc1")
    ts("attn done")
    a.wait(vm=tagO)
    a("s_barrier")
    lb = a.newlabel("L_nop")
    a(f"s_cmp_lg_u32 s{sW}, 0\ns_cbranch_scc1 {lb}")
    k = a.save(); flag_store(2); a.label(lb); a.merge(k)
    ts("o published")
    vFl = 13
    a(f"v_and_b32 v{vFl}, 15, v0\nv_lshlrev_b32 v{vFl}, 2, v{vFl}\ns_lshl_b32 s3, s{sR}, 7\ns_add_u32 s3, s3, {FLAGS+2048}\nv_add_u32 v{vFl}, s3, v{vFl}")
    poll(vFl, SWS, vT)
    ts("h flags ok")
    a(f"s_lshr_b32 s3, s{sC}, 3\ns_lshl_b32 s3, s3, 1\ns_and_b32 s{sT2}, s{sW}, 1\ns_add_u32 s{sT2}, s{sT2}, s3")
    a(f"s_lshl_b32 s3, s{sR}, 2\ns_add_u32 s3, s3, s{sT2}\ns_lshl_b32 s3, s3, 17\ns_add_u32 s{sAct}, s3, {ACT}")
    a(f"s_lshl_b32 s3, s{sKq}, 10\ns_add_u32 s{sT3}, s{sAct}, s3")
    HF = 128
    tagHF = []
    for b in range(22):
        tagHF.append(a.vm(f"buffer_load_dwordx4 {vr(HF+4*b,4)}, v{vL16}, {srd(SWS)}, s{sT3} offen sc1"))
        a(f"s_add_u32 s{sT3}, s{sT3}, 4096")
    for e in range(6): dma_w3(13+e, 4+e)
    A3 = 96
    vA3 = 14
    W3F = 32
    a(f"v_lshrrev_b32 v{vT}, 5, v0\nv_bfe_u32 v{vT+1}, v0, 2, 2\nv_lshl_add_u32 v{vT}, v{vT}, 2, v{vT+1}\nv_lshlrev_b32 v{vT}, 7, v{vT}")
    a(f"v_lshrrev_b32 v{vT+1}, 1, v{vT+1}\nv_lshl_add_u32 v{vT}, v{vT+1}, 6, v{vT}\nv_bfe_u32 v{vT+1}, v0, 4, 1\nv_lshl_add_u32 v{vT}, v{vT+1}, 5, v{vT}")
    a(f"v_and_b32 v{vT+1}, 3, v0\nv_lshl_add_u32 v{vT}, v{vT+1}, 3, v{vT}\ns_lshl_b32 s3, s{sKq}, 11\nv_add_u32 v{vA3}, s3, v{vT}\nv_xor_b32 v{vA3+1}, 64, v{vA3}")
    win[vA3] = 0; win[vA3+1] = 0
    a(f"v_lshrrev_b32 v{vT}, 2, v{vL16}\nv_and_b32 v{vT}, 0x7c, v{vT}\ns_lshl_b32 s3, s{sT2}, 7\ns_add_u32 s3, s3, {OMGL}\nv_add_u32 v{vT}, s3, v{vT}")
    t_ = a.ds(f"ds_read_b32 v{vT}, v{vT}")
    for e, b2 in enumerate((vB2a, vB2b)):
        d = 64 + 4*e
        a(f"v_lshl_or_b32 v{d}, v{b2}, 16, v{b2}\nv_mov_b32 v{d+1}, 0\nv_mov_b32 v{d+2}, 0\nv_mov_b32 v{d+3}, 0")
    a.wait(lg=t_)
    a(f"v_cvt_pk_bf16_f32 v{vT+1}, v{vT}, v{vT}\nv_and_b32 v{vT+1}, 0xffff0000, v{vT+1}\nv_sub_f32 v{vT+2}, v{vT}, v{vT+1}\nv_cvt_pk_bf16_f32 v72, v{vT+1}, v{vT+2}")
    a("v_mov_b32 v73, 0\nv_mov_b32 v74, 0\nv_mov_b32 v75, 0")
    a(f"v_mfma_f32_32x32x16_bf16 {vr(A3,16)}, v[64:67], v[72:75], 0")
    a(f"v_mfma_f32_32x32x16_bf16 {vr(A3+16,16)}, v[68:71], v[72:75], 0")
    refill = {1: [(19,12),(20,13),(21,18),(22,14)], 2: [(23,15),(24,16)], 3: [(25,17),(26,0),(27,1),(28,2)], 4: [(29,3)]}
    def w3reads(b, off, buf):
        base = w3slot[b]*BLK + off
        for r in (vA3, vA3+1): prewin(r, base, base+1024)
        for ct in range(2):
            a.ds(f"ds_read_b64_tr_b16 {vr(buf+4*ct,2)}, {lds(vA3+ct, base)}")
            t_ = a.ds(f"ds_read_b64_tr_b16 {vr(buf+4*ct+2,2)}, {lds(vA3+ct, base+1024)}")
        return t_
    for g in range(6):
        bs = [b for b in range(4*g, 4*g+4) if b < 22]
        ts(f"g{g} pre")
        a.wait(vm=max(tagW3[b] for b in bs))
        ts(f"g{g} vm")
        a("s_barrier")
        for b, sl in refill.get(g, []): dma_w3(b, sl)
        tg = [w3reads(b, 0, W3F + 8*(b % 4)) for b in bs]
        for b, t_ in zip(bs, tg):
            a.wait(vm=tagHF[b], lg=t_)
            if b == 21:
                lk = a.newlabel("L_sk"); a(f"s_cmp_ge_u32 s{sKq}, 2\ns_cbranch_scc1 {lk}"); k = a.save()
            for ct in range(2):
                a(f"v_mfma_f32_32x32x16_bf16 {vr(A3+16*ct,16)}, {vr(W3F+8*(b%4)+4*ct,4)}, {vr(HF+4*b,4)}, {vr(A3+16*ct,16)}")
            if b == 21: a.label(lk); a.merge(k)
    ts("h gemm done")
    RB = 4*BLK
    vD = 64
    a(f"v_and_b32 v{vT}, 31, v0\nv_lshlrev_b32 v{vT+1}, 8, v{vT}\ns_lshl_b32 s3, s{sW}, 13\ns_add_u32 s3, s3, {RB}\nv_add_u32 v{vT+1}, s3, v{vT+1}")
    a(f"v_and_b32 v{vT}, 7, v0\nv_lshrrev_b32 v{vT+2}, 5, v0\nv_xor_b32 v{vT}, v{vT}, v{vT+2}")
    for j in range(4): a(f"v_xor_b32 v{vT+2}, {2*j}, v{vT}\nv_lshl_add_u32 v{vD+j}, v{vT+2}, 4, v{vT+1}")
    a.wait(vm=tagW3[29])
    a("s_barrier")
    ldep = a.newlabel("L_dep")
    a(f"s_cmp_ge_u32 s{sW}, 4\ns_cbranch_scc1 {ldep}")
    k = a.save()
    nvm0, nlg0 = a.nvm, a.nlg
    a(f"v_add_u32 v{vFl}, 2048, v{vFl}")
    poll(vFl, SWS, vT)
    ts("o flags ok")
    a(f"s_lshl_b32 s3, s{sKq}, 11\ns_add_u32 s{sT3}, s{sAct}, s3\ns_add_u32 s{sT3}, s{sT3}, {96*1024}")
    OF = 128
    tagOF = []
    for bb in range(8):
        a(f"buffer_load_dwordx4 {vr(OF+8*bb,4)}, v{vL16}, {srd(SWS)}, s{sT3} offen sc1")
        tagOF.append(a.vm(f"buffer_load_dwordx4 {vr(OF+8*bb+4,4)}, v{vL16}, {srd(SWS)}, s{sT3} offen offset:1024 sc1"))
        a(f"s_add_u32 s{sT3}, s{sT3}, 4096")
    a(f"s_lshl_b32 s3, s{sKq}, 11\nv_add_u32 v{vA3}, s3, v{vA3}\nv_add_u32 v{vA3+1}, s3, v{vA3+1}")
    pend = [w3reads(22, 0, W3F), w3reads(22, 2048, W3F+8)]
    for bb in range(8):
        cur = pend
        if bb < 7:
            o = 16*((bb+1) % 2)
            pend = [w3reads(23+bb, 0, W3F+o), w3reads(23+bb, 2048, W3F+o+8)]
        o = 16*(bb % 2)
        for e in range(2):
            a.wait(vm=tagOF[bb], lg=cur[e])
            for ct in range(2):
                a(f"v_mfma_f32_32x32x16_bf16 {vr(A3+16*ct,16)}, {vr(W3F+o+8*e+4*ct,4)}, {vr(OF+8*bb+4*e,4)}, {vr(A3+16*ct,16)}")
    ts("o gemm done")
    a.label(ldep); a.merge(k)
    for ct in range(2):
        for j in range(4): a(f"ds_write_b128 v{vD+j}, {vr(A3+16*ct+4*j,4)} offset:{128*ct}")
    a(f"v_lshrrev_b32 v{vT}, 3, v0\nv_and_b32 v{vT+1}, 7, v0\nv_lshlrev_b32 v{vT+1}, 1, v{vT+1}\nv_xor_b32 v{vT+1}, v{vT+1}, v{vT}")
    a(f"s_lshl_b32 s3, s{sT}, 11\ns_lshl_b32 s{sT2}, s{sS}, 13\ns_add_u32 s3, s3, s{sT2}\ns_add_u32 s3, s3, {RB}")
    a(f"v_lshlrev_b32 v{vT+2}, 8, v{vT}\nv_lshl_add_u32 v{vT+2}, v{vT+1}, 4, v{vT+2}\nv_add_u32 v{vT+2}, s3, v{vT+2}\nv_xor_b32 v{vT+3}, 16, v{vT+2}")
    a(f"s_lshl_b32 s3, s{sR}, 7\ns_lshr_b32 s{sT2}, s{sC}, 3\ns_lshl_b32 s{sT2}, s{sT2}, 6\ns_add_u32 s3, s3, s{sT2}\ns_lshl_b32 s{sT2}, s{sW}, 3\ns_add_u32 s3, s3, s{sT2}\ns_lshl_b32 s3, s3, 10")
    a(f"s_and_b32 s{sT2}, s{sC}, 7\ns_lshl_b32 s{sT2}, s{sT2}, 7\ns_add_u32 s3, s3, s{sT2}")
    a(f"v_lshlrev_b32 v{vT}, 10, v{vT}\nv_and_b32 v{vT+1}, 0x70, v{vL16}\nv_add_u32 v{vT}, v{vT}, v{vT+1}")
    a("s_waitcnt lgkmcnt(0)\ns_barrier")
    R0 = 128
    for kq in range(4):
        a(f"ds_read_b128 {vr(R0+8*kq,4)}, v{vT+2} offset:{kq*16384}\nds_read_b128 {vr(R0+8*kq+4,4)}, v{vT+3} offset:{kq*16384}")
    a("s_waitcnt lgkmcnt(4)")
    for e in range(4): a(f"v_pk_add_f32 {vr(R0+2*e,2)}, {vr(R0+2*e,2)}, {vr(R0+8+2*e,2)}")
    a("s_waitcnt lgkmcnt(0)")
    for e in range(4): a(f"v_pk_add_f32 {vr(R0+16+2*e,2)}, {vr(R0+16+2*e,2)}, {vr(R0+24+2*e,2)}")
    for e in range(4): a(f"v_pk_add_f32 {vr(R0+2*e,2)}, {vr(R0+2*e,2)}, {vr(R0+16+2*e,2)}")
    for e in range(4): a(f"v_cvt_pk_bf16_f32 v{R0+8+e}, v{R0+2*e}, v{R0+2*e+1}")
    a(f"buffer_store_dwordx4 {vr(R0+8,4)}, v{vT}, {srd(SOUT)}, s3 offen")
    if debug:
        a("s_waitcnt vmcnt(0)")
        ts("end")
        a(f"s_memrealtime s[{sTS}:{sTS+1}]\ns_waitcnt lgkmcnt(0)\nv_writelane_b32 v{vTS}, s{sTS}, 62")
        a(f"v_writelane_b32 v{vTS}, s{sSpin}, 63")
        a(f"s_lshl_b32 s3, s2, 3\ns_add_u32 s3, s3, s{sW}\ns_lshl_b32 s3, s3, 8\ns_add_u32 s3, s3, {TSB}\nv_lshlrev_b32 v{vT}, 2, v0")
        a(f"buffer_store_dword v{vTS}, v{vT}, {srd(SWS)}, s3 offen")
        if probe:
            a(f"v_readlane_b32 s20, v{vTS}, 61\nv_readlane_b32 s21, v{vTS}, 62\ns_not_b32 s20, s20")
            a(f"v_mov_b32 v40, s20\nv_mov_b32 v41, s21\nv_mov_b32 v42, 4\nv_mov_b32 v43, 8\ns_mov_b64 exec, 1")
            a(f"buffer_atomic_umax v40, v42, {srd(SDBG)}, 0 offen\nbuffer_atomic_umax v41, v43, {srd(SDBG)}, 0 offen")
            a(f"s_cmp_lg_u32 s2, 100\ns_cbranch_scc1 L_end\ns_cmp_lg_u32 s{sW}, 0\ns_cbranch_scc1 L_end")
            a(f"v_readlane_b32 s22, v{vTS}, 0")
            sel = ["dma0 issued","stage0 landed","pass1 done","kv published","pass2 done","gelu done","h published","attn done","o published","g0 pre","h gemm done","o gemm done","end"]
            for n, nm in enumerate(sel):
                a(f"v_readlane_b32 s23, v{vTS}, {TSN.index(nm)}\ns_sub_u32 s23, s23, s22\nv_mov_b32 v40, s23\nv_mov_b32 v42, {12+4*n}")
                a(f"buffer_store_dword v40, v42, {srd(SDBG)}, 0 offen")
    a.label("L_end")
    a("s_endpgm")
    a.raw("L_code_end:")
    a.raw(f".set CODE_LAST, L_code_end - {NAME} - 64")
    a.raw(f""".section .rodata,"a"
.p2align 6
.amdhsa_kernel {NAME}
  .amdhsa_next_free_vgpr 256
  .amdhsa_next_free_sgpr 102
  .amdhsa_accum_offset 256
  .amdhsa_group_segment_fixed_size 0
  .amdhsa_kernarg_size 96
  .amdhsa_user_sgpr_count 2
  .amdhsa_user_sgpr_kernarg_segment_ptr 1
  .amdhsa_system_sgpr_workgroup_id_x 1
.end_amdhsa_kernel""")
    txt, pads = a.finish()
    return txt, pads

if __name__ == "__main__":
    txt, pads = gen(debug=False)
    open("gated_mix__sliding_block__mixer_channel_mlp__prompt.s", "w").write(txt)
    txt, pads2 = gen(debug=True)
    open("dbg.s", "w").write(txt)
    open("dbg_ts.txt", "w").write("\n".join(TSN))
    open("probe.s", "w").write(gen(debug=True, probe=True)[0])
    print("pads", pads, pads2)
```

```python
import re

TRANS = ("v_exp_", "v_log_", "v_rcp_", "v_rsq_", "v_sqrt_", "v_sin_", "v_cos_")

def regs_of(tok):
    tok = tok.strip()
    tok = re.sub(r"^-|^\||\|$", "", tok)
    m = re.fullmatch(r"abs\((.*)\)", tok)
    if m: tok = m.group(1)
    m = re.fullmatch(r"([vsa])\[(\d+):(\d+)\]", tok)
    if m: return {(m.group(1), i) for i in range(int(m.group(2)), int(m.group(3)) + 1)}
    m = re.fullmatch(r"([vsa])(\d+)", tok)
    if m: return {(m.group(1), int(m.group(2)))}
    if tok in ("vcc", "vcc_lo", "vcc_hi"): return {("s", "vcc")}
    if tok in ("exec", "exec_lo", "exec_hi"): return {("s", "exec")}
    if tok == "m0": return {("s", "m0")}
    return set()

class Ins:
    __slots__ = ("text", "op", "kind", "dst", "src", "srcA", "srcB", "srcC", "states", "passes", "data", "lds", "sdst", "cnt", "seq", "wvm", "wlg")
    def __init__(self, text):
        self.text = text
        self.cnt = False; self.seq = None; self.wvm = None; self.wlg = None
        t = text.split(";")[0].strip()
        parts = t.split(None, 1)
        self.op = op = parts[0]
        rest = parts[1] if len(parts) > 1 else ""
        ops = []
        depth = 0; cur = ""
        for ch in rest:
            if ch == "[": depth += 1
            if ch == "]": depth -= 1
            if ch == "," and depth == 0:
                ops.append(cur.strip()); cur = ""
            else: cur += ch
        if cur.strip(): ops.append(cur.strip())
        if ops:
            last = ops[-1].split()
            mods = last[1:]
            ops[-1] = last[0] if last else ""
        else: mods = []
        self.dst = set(); self.src = set(); self.srcA = set(); self.srcB = set(); self.srcC = set(); self.data = set()
        self.sdst = set()
        self.states = 1; self.passes = 0; self.lds = "lds" in mods
        R = regs_of
        if op == "s_nop":
            self.kind = "nop"; self.states = int(ops[0], 0) + 1
        elif op.startswith("v_mfma"):
            self.kind = "mfma"; self.dst = R(ops[0]); self.srcA = R(ops[1]); self.srcB = R(ops[2]); self.srcC = R(ops[3])
            self.src = self.srcA | self.srcB | self.srcC
            self.passes = 8 if "32x32x16" in op else 4
        elif op.startswith("v_"):
            self.kind = "valu"
            self.dst = R(ops[0]); rest_ops = ops[1:]
            if op.startswith(("v_add_co", "v_addc_co", "v_sub_co", "v_subb_co", "v_subrev_co")):
                self.dst |= R(ops[1]); rest_ops = ops[2:]
            for o in rest_ops: self.src |= R(o)
            if op.startswith(("v_fmac", "v_dot2c", "v_permlane")): self.src |= R(ops[0])
            if op.startswith("v_permlane") and "swap" in op: self.dst |= R(ops[1])
            if op.startswith("v_cmpx"): self.dst |= {("s", "exec")}
            self.sdst = {r for r in self.dst if r[0] == "s"}
        elif op.startswith("ds_"):
            self.kind = "ds"
            if op.startswith(("ds_read", "ds_bpermute", "ds_permute", "ds_swizzle")):
                self.dst = R(ops[0])
                for o in ops[1:]: self.src |= R(o)
            else:
                for o in ops: self.src |= R(o)
        elif op.startswith(("buffer_", "global_")):
            self.kind = "vmem"
            if op in ("buffer_wbl2", "buffer_inv"): pass
            elif op.startswith("buffer_load") and self.lds:
                for o in ops: self.src |= R(o)
                self.src |= {("s", "m0")}
            elif "load" in op:
                self.dst = R(ops[0])
                for o in ops[1:]: self.src |= R(o)
            else:
                for o in ops: self.src |= R(o)
                self.data = R(ops[0]) if op.startswith("buffer_") else R(ops[1])
        elif op.startswith("s_"):
            self.kind = "salu"
            if op.startswith(("s_cmp", "s_cbranch", "s_branch", "s_waitcnt", "s_barrier", "s_endpgm", "s_sleep", "s_setprio")):
                for o in ops: self.src |= R(o)
            else:
                self.dst = R(ops[0]) if ops else set()
                for o in ops[1:]: self.src |= R(o)
                if "saveexec" in op: self.dst |= {("s", "exec")}
        else:
            raise ValueError("unknown instr: " + text)

def need(prev, cur):
    n = 0
    p, c = prev, cur
    vd = {r for r in p.dst if r[0] in "va"}
    if p.kind == "valu":
        isdot = p.op.startswith("v_dot")
        if c.kind == "mfma" and vd & c.src: n = max(n, 3 if isdot else 2)
        if isdot and c.kind in ("valu", "ds", "vmem"):
            if (vd & c.src) or (vd & c.dst):
                same = c.op == p.op
                if same and vd & c.dst and not (vd & (c.src - c.dst)): pass
                else: n = max(n, 3)
        if p.op.startswith(TRANS) and c.kind == "valu" and not c.op.startswith(TRANS) and vd & c.src: n = max(n, 1)
        if p.op.startswith(TRANS) and c.kind in ("mfma",) and vd & c.src: n = max(n, 2)
        if c.kind == "valu" and c.op.startswith("v_permlane") and vd & c.src: n = max(n, 2)
        if c.kind == "valu" and c.op.startswith(("v_readlane", "v_readfirstlane")) and vd & c.src: n = max(n, 1)
        if c.kind == "valu" and "dpp" in c.text and vd & c.src: n = max(n, 2)
        if p.sdst:
            if c.kind == "valu" and p.sdst & c.src: n = max(n, 2)
            if c.kind == "valu" and c.op.startswith("v_cndmask") and ("s", "vcc") in p.sdst: n = max(n, 2)
            if c.kind == "vmem" and p.sdst & c.src: n = max(n, 5)
            if c.kind == "salu" and p.sdst & c.src: n = max(n, 1)
            if c.op.startswith(("s_cbranch_vcc",)) and ("s", "vcc") in p.sdst: n = max(n, 1)
            if ("s", "exec") in p.sdst and c.kind == "mfma": n = max(n, 4)
    if p.kind == "mfma":
        big = {4: 8, 8: 12}[p.passes]
        if c.kind == "mfma":
            if vd & (c.srcA | c.srcB): n = max(n, big)
            if vd & c.srcC:
                if c.srcC == p.dst and c.passes == p.passes: pass
                else: n = max(n, big - 2)
            elif vd & c.dst: n = max(n, big - 2)
        elif c.kind in ("valu", "ds", "vmem"):
            if vd & c.src or vd & c.dst: n = max(n, big)
        if c.kind == "valu" and p.srcC & c.dst: n = max(n, {4: 3, 8: 7}[p.passes])
    if p.kind == "vmem" and p.data and len(p.data) >= 3:
        if c.kind == "valu" and p.data & c.dst: n = max(n, 2)
        elif p.data & c.dst: n = max(n, 1)
    if p.kind == "salu" and ("s", "m0") in p.dst and c.kind == "vmem" and c.lds: n = max(n, 1)
    return n

class Asm:
    def __init__(self):
        self.out = []
        self.nvm = 0
        self.nlg = 0
        self.uid = 0
    def raw(self, s): self.out.append(s)
    def c(self, s): self.out.append("    ; " + s)
    def label(self, name): self.out.append(name + ":")
    def newlabel(self, p="L"):
        self.uid += 1; return f"{p}_{self.uid}"
    def __call__(self, text, count=True):
        ins = None
        for line in text.strip().split("\n"):
            line = line.strip()
            if not line: continue
            ins = Ins(line)
            ins.cnt = count and ins.kind in ("vmem", "ds")
            self.out.append(ins)
        return ins
    def vm(self, text): return self(text)
    def ds(self, text): return self(text)
    def wait(self, vm=None, lg=None):
        ins = Ins("s_waitcnt 0")
        ins.wvm = None if vm is None else (list(vm) if isinstance(vm, (list, tuple)) else [vm])
        ins.wlg = None if lg is None else (list(lg) if isinstance(lg, (list, tuple)) else [lg])
        self.out.append(ins)
    def mix(self, streams, gaps=None):
        ev = []
        for si, (items, lo, hi) in enumerate(streams):
            units = []; cur = []; atom = False
            for x in items:
                if isinstance(x, str) and not x.endswith(":") and not x.startswith("    ;"): x = Ins(x); x.cnt = x.kind in ("vmem", "ds")
                if isinstance(x, tuple) and x[0] == "ATOM":
                    atom = x[1]
                    if not atom and cur: units.append(cur); cur = []
                    continue
                if isinstance(x, Ins):
                    cur.append(x)
                    if not atom: units.append(cur); cur = []
                else:
                    if units and not cur: units[-1].append(x)
                    else: cur.append(x)
            if cur: units.append(cur)
            def wscc(i): return i.kind == "salu" and not i.op.startswith(("s_mov", "s_mul", "s_cselect", "s_cbranch", "s_branch", "s_waitcnt", "s_nop", "s_barrier", "s_setprio", "s_sleep", "s_load", "s_memtime"))
            def rscc(i): return i.op.startswith(("s_cselect", "s_cbranch_scc", "s_addc", "s_subb"))
            k = 0
            while k < len(units):
                ins = [x for x in units[k] if isinstance(x, Ins)]
                needs = False
                for x in ins:
                    if rscc(x): needs = True; break
                    if wscc(x): break
                if needs and k > 0:
                    units[k-1] = units[k-1] + units[k]; del units[k]; k -= 1
                else: k += 1
            n = len(units)
            for k, u in enumerate(units): ev.append((lo + (hi - lo) * k / max(n, 1), si, k, u))
        if gaps:
            ev = [(min(int(e[0] * gaps + 1e-9), gaps - 1),) + e[1:] for e in ev]
        ev.sort(key=lambda e: e[:3])
        for e in ev: self.out.extend(e[3])
    def cap(self, fn):
        old = self.out; self.out = []
        fn()
        got = self.out; self.out = old
        return got
    def atomic(self, on): self.out.append(("ATOM", on))
    def weave(self, mf, fill, lead=0, tailfree=0):
        n = sum(1 for x in fill if isinstance(x, Ins))
        span = max(n - lead - tailfree, 0)
        pos = [lead + (span * k) // len(mf) for k in range(len(mf))] if mf else []
        k = 0; cnt = 0; atom = False
        for x in fill:
            if isinstance(x, tuple) and x[0] == "ATOM":
                atom = x[1]; continue
            if isinstance(x, Ins):
                while k < len(mf) and pos[k] <= cnt and not atom:
                    self(mf[k]); k += 1
                cnt += 1
            self.out.append(x)
        while k < len(mf):
            self(mf[k]); k += 1
    def save(self):
        self.uid += 1; self.out.append(("SAVE", self.uid)); return self.uid
    def restore(self, k): self.out.append(("RESTORE", k))
    def merge(self, k): self.out.append(("MERGE", k))
    def finish(self):
        res = []
        hists = [[]]
        saved = {}
        pads = 0
        nvm = nlg = 0; scnt = {}
        for o in self.out:
            if isinstance(o, tuple):
                if o[0] == "SAVE": scnt[o[1]] = (nvm, nlg)
                elif o[0] == "RESTORE": nvm, nlg = scnt[o[1]]
            elif isinstance(o, Ins):
                if o.wvm is not None or o.wlg is not None:
                    p = []
                    if o.wvm is not None:
                        n = nvm - 1 - max(t.seq for t in o.wvm); assert n >= 0
                        p.append(f"vmcnt({min(n,63)})")
                    if o.wlg is not None:
                        n = nlg - 1 - max(t.seq for t in o.wlg); assert n >= 0
                        p.append(f"lgkmcnt({min(n,15)})")
                    o.text = "s_waitcnt " + " ".join(p)
                elif o.cnt:
                    if o.kind == "vmem": o.seq = nvm; nvm += 1
                    else: o.seq = nlg; nlg += 1
        for o in self.out:
            if isinstance(o, tuple):
                if o[0] == "ATOM": continue
                if o[0] == "SAVE": saved[o[1]] = [list(h) for h in hists]
                elif o[0] == "RESTORE": hists = [list(h) for h in saved[o[1]]]
                else: hists = hists + [list(h) for h in saved[o[1]]]
                continue
            if isinstance(o, str):
                res.append(o); continue
            req = 0
            for hist in hists:
                dist = 0
                for p in reversed(hist):
                    r = need(p, o) - dist
                    if r > req: req = r
                    dist += p.states
                    if dist >= 20: break
            while req > 0:
                k = min(req, 16)
                nop = Ins(f"s_nop {k-1}")
                res.append("    " + nop.text)
                for hist in hists: hist.append(nop)
                req -= k; pads += 1
            res.append("    " + o.text)
            new = []
            for hist in hists:
                hist.append(o)
                hist = hist[-24:]
                if not any(len(hist) == len(h2) and all(x is y for x, y in zip(hist, h2)) for h2 in new): new.append(hist)
            hists = new
        return "\n".join(res) + "\n", pads
```

```python
import sys, struct
from asmlib import *
NAME = "gated_mix__sliding_block__mixer_channel_mlp__prompt_kernel"
HDR = open("gated_mix__sliding_block__mixer_channel_mlp__prompt.s.ref").read().split("; Override launch")[0]

FL_KV = 0x10000; FL_H = 0x20000; FL_O = 0x30000
KBUF = 0x40000
VBUF = KBUF + 0x200000
ACT = VBUF + 0x200000
TSB = ACT + 0x800000
WS_SIZE = TSB + 0x80000
LDS_BYTES = 163840
BLK = 8192
MISC = 19 * BLK
GWL = MISC
STL = MISC + 1024
CSL = MISC + 1024
OMGL = MISC + 5120
KL = 12 * BLK; VL = KL + 24576
RB = 10 * BLK
LOG2E = 1.4426950408889634
def f2u(f): return struct.unpack("<I", struct.pack("<f", f))[0]
def hx(f): return "0x%08x" % f2u(f)
TSN = []
DEF = dict(pf=1, fine=False, hpub=2, hpoll=5, hchk=7, prio=1, w3go=6, outsc1=False, kvpub=10, kvpoll=12, kvchk=13, hahead=8, opub=3, opoll=12, ochk=15, forcefb=False, strip=0)

def gen(debug=False, P=None):
    P = dict(DEF, **(P or {}))
    a = Asm()
    tail = []
    sW, sT, sS, sR, sC = 4, 5, 6, 7, 8
    sW1k, sW2k, sOX, sOKV, sOPa, sOPb, sPinc = 9, 10, 11, 12, 13, 14, 15
    sHM = 11
    SX, SQ, SW1, SPB, SW2, SWO, SWS, SOUT, SDBG, SB2 = 40, 44, 48, 52, 56, 60, 64, 68, 72, 76
    SGW, SB1 = 16, 20
    sKVo0, sKVo1, sHo, sOo, sAct, sOW3, sI0, sSpin, sT2, sT3, sONE, sKq = 80, 81, 82, 83, 84, 85, 86, 87, 88, 89, 90, 91
    sTS = 92; sEX = 94
    sX, sFl, sTT3, sHL = 96, 97, 98, 99
    sN = 100
    sKi0, sKi1, sKi2, sKt = 13, 14, 15, 12
    def srd(b): return f"s[{b}:{b+3}]"
    def vr(b, n): return f"v[{b}:{b+n-1}]"
    vL16, vW3, vPa, vPb, vB1a, vB1b, vTS = 1, 2, 3, 4, 5, 6, 7
    vCS = 8; vA01, vIG, vMS = 10, 12, 14; vS = 10
    vA = 16; vT = 28; WB = 32
    ACC1 = 96; ACC2 = 112; ACC0 = 112; XR = 128
    vXa, vXb, vKV, vZ, vAX, vAW, vAG = 96, 97, 98, 99, 100, 104, 108
    fL8, fS8, fL4, fSW, fRow, fH, fCH, fR4, fC8, fTok, fHR, f0, f1, f2, f3 = range(240, 255)
    nts = [0]
    del TSN[:]
    def ts(name="", fine=False):
        if not debug or (fine and not P["fine"]): return
        a(f"s_memtime s[{sTS}:{sTS+1}]\ns_waitcnt lgkmcnt(0)")
        a(f"v_writelane_b32 v{vTS}, s{sTS}, {nts[0]}")
        TSN.append(name); nts[0] += 1
    def srdw(b, n): a(f"s_mov_b32 s{b+2}, {n}\ns_mov_b32 s{b+3}, 0x00020000")
    def rare(cond_branch, body, padin=7, padout=1):
        lo, lb = a.newlabel("L_rare"), a.newlabel("L_back")
        a(f"{cond_branch} {lo}")
        a.label(lb)
        def emit():
            a.label(lo)
            a(f"s_nop {padin}")
            body()
            a(f"s_nop {padout}\ns_branch {lb}")
        tail.append(emit)
    def lane0(txt, count=True):
        a.atomic(True); a("s_mov_b64 exec, 1"); t_ = a(txt, count=count); a("s_mov_b64 exec, -1"); a.atomic(False)
        return t_

    a.raw(HDR.rstrip())
    a.raw(f"; @launch grid=(256,1,1) block=(512,1,1) lds={LDS_BYTES}")
    a.raw('.amdgcn_target "amdgcn-amd-amdhsa--gfx950"\n.text')
    a.raw(f".globl {NAME}\n.p2align 8\n.type {NAME},@function\n{NAME}:")
    a("s_cmp_ge_u32 s2, 0x100\ns_cbranch_scc1 L_end")
    a(f"s_load_dwordx2 s[{SX}:{SX+1}], s[0:1], 0\ns_load_dwordx2 s[{SQ}:{SQ+1}], s[0:1], 8\ns_load_dwordx2 s[{SGW}:{SGW+1}], s[0:1], 64")
    a(f"s_getpc_b64 s[{sEX}:{sEX+1}]")
    a("s_bfe_u32 s8, s2, 0x30003\nv_and_b32 v28, 31, v0\nv_lshlrev_b32 v28, 3, v28\nv_add_lshl_u32 v28, v28, s8, 7\nv_min_u32 v28, CODE_LAST, v28")
    a("v_cmp_gt_u32 vcc, 32, v0\ns_cbranch_vccz L_nocpf")
    a(f"global_load_dword v29, v28, s[{sEX}:{sEX+1}]", count=False)
    a.label("L_nocpf")
    a("v_lshrrev_b32 v30, 6, v0\nv_and_b32 v0, 63, v0")
    a(f"v_readfirstlane_b32 s{sW}, v30")
    a(f"s_and_b32 s3, s2, 6\ns_lshl_b32 s3, s3, 1\ns_lshr_b32 s{sR}, s2, 6\ns_add_u32 s{sR}, s{sR}, s3")
    a(f"s_and_b32 s3, s2, 1\ns_lshl_b32 s3, s3, 3\ns_add_u32 s{sC}, s{sC}, s3")
    a(f"v_lshrrev_b32 v{fL8}, 3, v0\nv_and_b32 v{fS8}, 7, v0\nv_lshrrev_b32 v{fL4}, 4, v0")
    a(f"s_lshl_b32 s{sW1k}, s{sW}, 10\ns_lshl_b32 s{sW2k}, s{sW}, 11")
    a(f"s_lshl_b32 s3, s{sR}, 3\ns_add_u32 s3, s3, s{sW}\ns_lshl_b32 s{sOX}, s3, 14")
    a(f"v_xor_b32 v{f0}, v{fS8}, v{fL4}\nv_lshlrev_b32 v{f0}, 4, v{f0}\nv_lshl_add_u32 v{vXa}, v{fL8}, 10, v{f0}")
    a(f"v_xor_b32 v{vXb}, 64, v{vXa}\nv_add_u32 v{vXb}, {8192-1024}, v{vXb}")
    a(f"v_and_b32 v{fCH}, 1, v{fL4}\nv_lshlrev_b32 v{fSW}, 2, v{fCH}\nv_xor_b32 v{fSW}, v{fSW}, v{fS8}\nv_lshlrev_b32 v{fSW}, 4, v{fSW}")
    a(f"s_mul_i32 s{sOKV}, s{sW}, {8*3072}\ns_lshl_b32 s3, s{sC}, 7\ns_add_u32 s{sOKV}, s{sOKV}, s3")
    a(f"v_mul_u32_u24 v{vKV}, 3072, v{fL8}\nv_add_u32 v{vKV}, v{vKV}, v{fSW}")
    srdw(SX, 2048*1024); srdw(SQ, 512*3072); srdw(SGW, 1024)
    a(f"s_and_b32 s{sT}, s{sW}, 3\nv_lshlrev_b32 v{f1}, 2, v0")
    a("s_waitcnt lgkmcnt(0)")
    if debug:
        a(f"v_mov_b32 v{vTS}, 0")
        a(f"s_memrealtime s[{sTS}:{sTS+1}]\ns_waitcnt lgkmcnt(0)\nv_writelane_b32 v{vTS}, s{sTS}, 61")
        ts("start")
    tagD = {}; T = {}
    def dma_p1(q):
        a(f"s_add_u32 m0, s{sW2k}, {(q%4)*2*BLK}")
        a(f"buffer_load_dwordx4 v{vXa}, {srd(SX)}, s{sOX} offen lds")
        a(f"buffer_load_dwordx4 v{vXb}, {srd(SX)}, s{sOX} offen offset:1024 lds")
        a(f"s_add_u32 m0, s{sW1k}, {(8+q%4)*BLK-1024}")
        a(f"s_add_u32 s{sOX}, s{sOX}, 128")
        tagD[q] = a.vm(f"buffer_load_dwordx4 v{vKV}, {srd(SQ)}, s{sOKV} offen offset:1024 lds")
        a(f"s_add_u32 s{sOKV}, s{sOKV}, {64*3072}")
    def dma_p2(i):
        a(f"s_add_u32 m0, s{sW2k}, {(i%4)*2*BLK}")
        a(f"buffer_load_dwordx4 v{vPa}, {srd(SW1)}, s{sOPa} offen lds")
        a(f"s_add_u32 m0, s{sW2k}, {(i%4)*2*BLK+1024}")
        a(f"s_add_u32 s{sOPa}, s{sOPa}, {64*2752}")
        tagD[i] = a.vm(f"buffer_load_dwordx4 v{vPb}, {srd(SPB)}, s{sOPb} offen lds")
        a(f"s_add_u32 s{sOPb}, s{sOPb}, s{sPinc}")
    w3slot = {}; tagW3 = {}
    def dma_w3(b, slot):
        assert b == len(w3slot)
        w3slot[b] = slot
        if b == 22: a(f"s_mov_b32 s{sOW3}, 0")
        a(f"s_add_u32 m0, s{sW1k}, {slot*BLK}")
        tagW3[b] = a.vm(f"buffer_load_dwordx4 v{vW3}, {srd(SW2 if b < 22 else SWO)}, s{sOW3} offen lds")
        a(f"s_add_u32 s{sOW3}, s{sOW3}, {64*1024}")
    dma_p1(0)
    a(f"s_lshl_b32 s3, s{sT}, 8\ns_add_u32 m0, s3, {GWL}")
    tagGW = a.vm(f"buffer_load_dword v{f1}, {srd(SGW)}, s3 offen lds")
    a(f"s_load_dwordx2 s[{SW1}:{SW1+1}], s[0:1], 32\ns_load_dwordx2 s[{SW2}:{SW2+1}], s[0:1], 48\ns_load_dwordx2 s[{SWO}:{SWO+1}], s[0:1], 16\ns_load_dwordx2 s[{SWS}:{SWS+1}], s[0:1], 88")
    a(f"s_load_dwordx2 s[{SOUT}:{SOUT+1}], s[0:1], 72\ns_load_dwordx2 s[{SDBG}:{SDBG+1}], s[0:1], 80\ns_load_dwordx2 s[{SB1}:{SB1+1}], s[0:1], 40\ns_load_dwordx2 s[{SB2}:{SB2+1}], s[0:1], 56")
    a("s_barrier")
    dma_p1(1)
    ts("d1 issued")
    srdw(SW1, 512*2752); srdw(SW2, 1376*1024); srdw(SWO, 512*1024); srdw(SWS, WS_SIZE)
    a("s_waitcnt lgkmcnt(0)\ns_barrier")
    if P["pf"]:
        lend = a.newlabel("L_pfe")
        def x_():
            a(f"s_lshr_b32 s{sT2}, s2, 3\ns_and_b32 s3, s2, 7\ns_lshl_b32 s3, s3, 5\ns_add_u32 s3, s3, s{sT2}\ns_lshl_b32 s3, s3, 13\nv_lshlrev_b32 v{f0}, 7, v0")
            a(f"buffer_load_dword v31, v{f0}, {srd(SX)}, s3 offen", count=False)
        def up():
            a(f"s_lshr_b32 s{sT2}, s2, 3\ns_bfe_u32 s{sT3}, s2, 0x20001\ns_lshl_b32 s{sT3}, s{sT3}, 5\ns_add_u32 s{sT3}, s{sT3}, s{sT2}\ns_and_b32 s{sT2}, s2, 1")
            a(f"s_lshl_b32 s3, s{sT3}, 2\nv_add_u32 v{f0}, s3, v{fL4}")
        def q_():
            up()
            a(f"v_mul_u32_u24 v{f0}, 3072, v{f0}")
            a(f"s_lshl_b32 s3, s{sT2}, 10\ns_add_u32 s3, s3, 1024\nv_lshl_add_u32 v{f1}, v{fS8}, 7, s3")
            a(f"s_lshl_b32 s3, s{sT2}, 9\nv_and_b32 v{f2}, 3, v0\nv_lshl_add_u32 v{f2}, v{f2}, 7, s3\nv_and_b32 v{f3}, 8, v0\nv_cmp_eq_u32 vcc, 0, v{f3}\nv_cndmask_b32 v{f1}, v{f2}, v{f1}, vcc\nv_add_u32 v{f0}, v{f0}, v{f1}")
            a(f"buffer_load_dword v31, v{f0}, {srd(SQ)}, 0 offen", count=False)
        def w1_():
            up()
            a(f"v_mul_u32_u24 v{f0}, 2752, v{f0}")
            a(f"v_and_b32 v{f1}, 15, v0\nv_lshlrev_b32 v{f1}, 7, v{f1}\nv_min_u32 v{f1}, 1532, v{f1}\ns_mul_i32 s3, s{sT2}, 1536\nv_add_u32 v{f1}, s3, v{f1}\nv_min_u32 v{f1}, 2748, v{f1}\nv_add_u32 v{f0}, v{f0}, v{f1}")
            a(f"buffer_load_dword v31, v{f0}, {srd(SW1)}, 0 offen", count=False)
        def w2_():
            a(f"s_mul_i32 s3, s2, {43*128}\nv_min_u32 v{f0}, 42, v0\nv_lshlrev_b32 v{f0}, 7, v{f0}")
            a(f"buffer_load_dword v31, v{f0}, {srd(SW2)}, s3 offen", count=False)
        def wo_():
            a(f"s_lshl_b32 s3, s2, 11\nv_and_b32 v{f0}, 15, v0\nv_lshlrev_b32 v{f0}, 7, v{f0}")
            a(f"buffer_load_dword v31, v{f0}, {srd(SWO)}, s3 offen", count=False)
        for n, fn in enumerate((x_, q_, w1_, w2_, wo_)):
            ln = a.newlabel("L_pf")
            a(f"s_cmp_lg_u32 s{sW}, {n}\ns_cbranch_scc1 {ln}")
            fn()
            a(f"s_branch {lend}")
            a.label(ln)
        a.label(lend)
    a(f"s_lshr_b32 s{sS}, s{sW}, 2\ns_lshl_b32 s{sX}, s{sS}, 1\ns_xor_b32 s{sX}, s{sX}, s{sT}")
    a(f"v_lshrrev_b32 v{fH}, 5, v0\nv_bfe_u32 v{fR4}, v0, 2, 2\nv_and_b32 v{fC8}, 3, v0\nv_lshlrev_b32 v{fC8}, 3, v{fC8}\nv_and_b32 v{fTok}, 31, v0\nv_lshl_add_u32 v{fHR}, v{fH}, 3, v{fR4}")
    a(f"s_lshl_b32 s3, s{sT}, 5\nv_add_lshl_u32 v{f0}, v{fTok}, s3, 7\nv_bfe_u32 v{f1}, v{fTok}, 1, 3\ns_lshl_b32 s3, s{sX}, 1\nv_xor_b32 v{f1}, v{f1}, v{fH}\nv_xor_b32 v{f1}, s3, v{f1}")
    a(f"v_lshl_add_u32 v{vAX}, v{f1}, 4, v{f0}")
    for j in range(1, 4): a(f"v_xor_b32 v{vAX+j}, {32*j}, v{vAX}")
    a(f"v_lshrrev_b32 v{f1}, 1, v{fR4}\nv_xor_b32 v{f1}, s{sS}, v{f1}\nv_lshl_add_u32 v{f2}, v{fCH}, 5, v{fC8}\nv_lshl_add_u32 v{f1}, v{f1}, 6, v{f2}")
    a(f"s_lshl_b32 s3, s{sX}, 11\ns_add_u32 s3, s3, {8*BLK}\nv_lshl_add_u32 v{f1}, v{fHR}, 7, v{f1}\nv_add_u32 v{vAW}, s3, v{f1}")
    for j in range(1, 4): a(f"v_xor_b32 v{vAW+j}, {j*2048}, v{vAW}")
    a(f"s_lshl_b32 s3, s{sX}, 5\ns_add_u32 s3, s3, {GWL}\nv_lshl_add_u32 v{vAG}, v{fH}, 4, s3\nv_xor_b32 v{vAG+1}, 32, v{vAG}")
    a(f"buffer_load_dword v{vZ}, off, {srd(SWS)}, 0 sc1")
    dma_p1(2)
    ts("d2 issued")

    def su_a():
        a(f"s_mov_b32 s{sONE}, 0x3f803f80\ns_lshr_b32 s{sKq}, s{sW}, 1\nv_lshlrev_b32 v{vL16}, 4, v0")
        for e in range(3): a(f"v_mov_b64 {vr(vS+2*e,2)}, 0")
        a(f"v_mov_b64 {vr(vCS,2)}, 0")
        srdw(SDBG, 256); srdw(SOUT, 2048*1024); srdw(SB1, 2752); srdw(SB2, 1024)
        a(f"s_bitcmp1_b32 s{sW}, 0")
        a(f"s_cselect_b64 s[{SPB}:{SPB+1}], s[{SQ}:{SQ+1}], s[{SW1}:{SW1+1}]")
        a(f"s_cselect_b32 s{SPB+2}, s{SQ+2}, s{SW1+2}\ns_mov_b32 s{SPB+3}, 0x00020000")
        a(f"s_mov_b32 s{sT2}, 3072\ns_mov_b32 s{sT3}, 2752\ns_cselect_b32 s{sPinc}, s{sT2}, s{sT3}")
        a(f"s_cselect_b32 s{sT2}, 64, 192\ns_mul_i32 s{sT2}, s{sT2}, s{sC}\ns_mul_i32 s{sOPb}, s{sPinc}, s{sKq}\ns_lshl_b32 s{sOPb}, s{sOPb}, 4\ns_add_u32 s{sOPb}, s{sOPb}, s{sT2}\ns_lshl_b32 s{sPinc}, s{sPinc}, 6")
        a(f"s_mul_i32 s{sOPa}, s{sKq}, {16*2752}\ns_mul_i32 s3, s{sC}, 192\ns_add_u32 s{sOPa}, s{sOPa}, s3")
    def su_b():
        def w1off(dst, i):
            a(f"v_mul_u32_u24 v{f1}, 171, v{i}\nv_lshrrev_b32 v{f1}, 11, v{f1}")
            a(f"v_mul_u32_u24 v{f2}, {2752-192}, v{f1}\nv_lshl_add_u32 v{dst}, v{i}, 4, v{f2}")
        a(f"s_and_b32 s3, s{sW}, 1\ns_lshl_b32 s3, s3, 7\nv_add_u32 v{f0}, s3, v0")
        w1off(vPa, f0)
        a(f"v_add_u32 v{f0}, 64, v0")
        w1off(vPb, f0)
        a(f"v_lshrrev_b32 v{f0}, 2, v0\nv_mul_u32_u24 v{f0}, 3072, v{f0}\nv_lshl_add_u32 v{f0}, v{fC8}, 1, v{f0}")
        a(f"s_bitcmp1_b32 s{sW}, 0\ns_cselect_b64 vcc, -1, 0\nv_cndmask_b32 v{vPb}, v{vPb}, v{f0}, vcc")
        a(f"s_and_b32 s3, s{sC}, 7\ns_lshl_b32 s3, s3, 7\ns_lshl_b32 s{sT2}, s{sW}, 13\ns_add_u32 s3, s3, s{sT2}\nv_lshl_add_u32 v{vW3}, v{fL8}, 10, v{fSW}\nv_add_u32 v{vW3}, s3, v{vW3}\ns_mov_b32 s{sOW3}, 0")
    def su_c():
        a(f"s_lshl_b32 s{sT2}, s{sX}, 12\ns_lshl_b32 s{sT3}, s{sS}, 5")
        a(f"v_mul_u32_u24 v{f0}, 192, v{fHR}\nv_add3_u32 v{f0}, v{f0}, v{fC8}, s{sT2}")
        a(f"s_lshl_b32 s3, s{sS}, 6\ns_add_u32 s3, s3, 64\nv_lshl_add_u32 v{f1}, v{fCH}, 5, s3\nv_add_u32 v{vA+8}, v{f0}, v{f1}")
        a(f"s_add_u32 s3, s{sT2}, s{sT3}\ns_add_u32 s3, s3, 3072\nv_lshl_add_u32 v{f1}, v{fHR}, 6, v{fC8}\nv_add_u32 v{f1}, s3, v{f1}")
        a(f"s_sub_u32 s3, 32, s{sT3}\nv_add_u32 v{f2}, s3, v{f0}\nv_cmp_eq_u32 vcc, 1, v{fCH}")
        a(f"v_lshl_add_u32 v{f3}, v{fCH}, 9, 0\nv_cndmask_b32 v{vA}, v{f1}, v{f2}, vcc\nv_add_u32 v{f3}, 256, v{f3}\nv_add_u32 v{vA+4}, v{vA}, v{f3}")
        for k in range(3):
            for j in range(1, 4): a(f"v_xor_b32 v{vA+4*k+j}, {j*4096}, v{vA+4*k}")
    def su_d():
        a(f"v_mov_b32 v{f3}, 0x40000000")
        a(f"s_mul_i32 s3, s{sC}, 6\ns_sub_u32 s3, s3, s{sS}\ns_lshl_b32 s3, s3, 5")
        a(f"v_lshl_add_u32 v{f0}, v{fTok}, 1, s3\nv_cmp_eq_u32 vcc, 1, v{fL4}\nv_cndmask_b32 v{f0}, v{f3}, v{f0}, vcc")
        a(f"buffer_load_ushort v{vB1a}, v{f0}, {srd(SB1)}, 0 offen")
        a(f"s_mul_i32 s3, s{sC}, 3\ns_add_u32 s3, s3, s{sS}\ns_add_u32 s3, s3, 1\ns_lshl_b32 s3, s3, 6")
        a(f"v_lshl_add_u32 v{f1}, v{fTok}, 1, s3\nv_lshl_add_u32 v{f1}, v{fH}, 25, v{f1}")
        T["b1"] = a.vm(f"buffer_load_ushort v{vB1b}, v{f1}, {srd(SB1)}, 0 offen")
    def su_e():
        a(f"s_lshl_b32 s{sT2}, s{sR}, 2\ns_add_u32 s{sT2}, s{sT2}, s{sT}")
        a(f"s_lshl_b32 s{sAct}, s{sC}, 1\ns_add_u32 s{sAct}, s{sAct}, s{sS}")
        a(f"s_lshl_b32 s{sT3}, s{sAct}, 17\ns_add_u32 s{sKVo0}, s{sT3}, {KBUF}")
        a(f"s_cmp_lt_u32 s{sC}, 8\ns_cselect_b32 s{sT3}, 10, 11\ns_cselect_b32 s3, 16, 10\ns_lshl_b32 s{sT3}, s{sT2}, s{sT3}\ns_add_u32 s{sKVo0}, s{sKVo0}, s{sT3}")
        a(f"s_lshl_b32 s3, 1, s3\ns_add_u32 s{sKVo1}, s{sKVo0}, s3")
        a(f"s_lshl_b32 s{sFl}, s{sAct}, 4\ns_add_u32 s{sFl}, s{sFl}, s{sR}\ns_lshl_b32 s{sFl}, s{sFl}, 7\ns_lshl_b32 s{sT3}, s{sT}, 3\ns_add_u32 s{sFl}, s{sFl}, s{sT3}\ns_add_u32 s{sFl}, s{sFl}, {FL_KV}")
        a(f"s_lshl_b32 s{sHL}, s{sT2}, 3\ns_lshr_b32 s{sT3}, s{sC}, 1\ns_add_u32 s{sHL}, s{sHL}, s{sT3}\ns_lshl_b32 s{sHL}, s{sHL}, 7\ns_and_b32 s{sT3}, s{sAct}, 3\ns_lshl_b32 s{sT3}, s{sT3}, 3\ns_add_u32 s{sHL}, s{sHL}, s{sT3}\ns_add_u32 s{sHL}, s{sHL}, {FL_H}")
        a(f"s_sub_i32 s{sI0}, 8, s{sT2}\ns_max_i32 s{sI0}, s{sI0}, 0")
        a(f"s_lshl_b32 s{sT3}, s{sT2}, 17\ns_add_u32 s{sT3}, s{sT3}, {ACT}")
        a(f"s_lshl_b32 s3, s{sAct}, 10\ns_add_u32 s{sOo}, s{sT3}, s3\ns_add_u32 s{sOo}, s{sOo}, {96*1024}")
        a(f"s_mul_i32 s3, s{sC}, {6*1024}\ns_add_u32 s{sHo}, s{sT3}, s3")
    def su_f():
        a(f"s_mov_b32 s{sSpin}, 0x40000")
        a(f"s_lshr_b32 s3, s{sC}, 3\ns_lshl_b32 s3, s3, 1\ns_and_b32 s{sTT3}, s{sW}, 1\ns_add_u32 s{sTT3}, s{sTT3}, s3")
        a(f"s_lshl_b32 s3, s{sR}, 2\ns_add_u32 s3, s3, s{sTT3}\ns_lshl_b32 s3, s3, 17\ns_add_u32 s{sAct}, s3, {ACT}\ns_lshl_b32 s3, s{sKq}, 10\ns_add_u32 s{sAct}, s{sAct}, s3")
    def masks(lo, hi):
        for i in range(lo, hi):
            m = 0
            for l in range(64):
                if 8*(i//4) + 4*(l//32) + i % 4 <= l % 32: m |= 1 << l
            a(f"s_mov_b32 s{16+2*i}, 0x{m & 0xffffffff:08x}\ns_mov_b32 s{17+2*i}, 0x{m >> 32:08x}")
    su_a()

    def flag_store(soff, tmp):
        a(f"v_mov_b64 {vr(tmp,2)}, s[{sN}:{sN+1}]")
        return lane0(f"buffer_store_dwordx2 {vr(tmp,2)}, off, {srd(SWS)}, s{soff} sc1")
    def poll_issue(voff, vtmp):
        return a.vm(f"buffer_load_dwordx2 {vr(vtmp,2)}, v{voff}, {srd(SWS)}, 0 offen sc1")
    def poll_check(tag, voff, vtmp):
        a.wait(vm=tag)
        a(f"v_cmp_ne_u64 vcc, s[{sN}:{sN+1}], {vr(vtmp,2)}")
        def slow():
            lp, dn = a.newlabel("L_poll"), a.newlabel("L_polld")
            a.label(lp)
            a(f"buffer_load_dwordx2 {vr(vtmp,2)}, v{voff}, {srd(SWS)}, 0 offen sc1")
            a(f"s_waitcnt vmcnt(0)\nv_cmp_ne_u64 vcc, s[{sN}:{sN+1}], {vr(vtmp,2)}\ns_cbranch_vccz {dn}")
            a(f"s_sleep 2\ns_sub_u32 s{sSpin}, s{sSpin}, 1\ns_cbranch_scc0 {lp}")
            a(f"s_mov_b32 s{sSpin}, 0")
            a.label(dn)
        rare("s_cbranch_vccnz", slow, 0, 0)

    def reads(i):
        buf = WB + 32*(i % 2)
        if i < 8:
            for j in range(4):
                a(f"ds_read_b128 {vr(XR+16*i+4*j,4)}, v{vAX+j} offset:{(i%4)*2*BLK}")
                a(f"ds_read_b64_tr_b16 {vr(buf+4*j,2)}, v{vAW+j} offset:{(i%4)*BLK}")
                a(f"ds_read_b64_tr_b16 {vr(buf+4*j+2,2)}, v{vAW+j} offset:{(i%4)*BLK+512}")
            for j in range(2): a(f"ds_read_b128 {vr(buf+16+4*j,4)}, v{vAG+j} offset:{i*128}")
        elif i < 16:
            base = (i % 4)*2*BLK
            for j in range(4):
                a(f"ds_read_b64_tr_b16 {vr(buf+8*j,2)}, v{vA+j} offset:{base}")
                a(f"ds_read_b64_tr_b16 {vr(buf+8*j+2,2)}, v{vA+4+j} offset:{base}")
                a(f"ds_read_b64_tr_b16 {vr(buf+8*j+4,2)}, v{vA+8+j} offset:{base}")
                t_ = a(f"ds_read_b64_tr_b16 {vr(buf+8*j+6,2)}, v{vA+8+j} offset:{base+768}")
                if j == 0: T["r0"] = t_
    def stats(q):
        buf = WB + 32*(q % 2); L = []
        if P["strip"] & 2: return L
        for e in range(8):
            x = XR+16*q+e; p = e % 2
            L.append(f"v_dot2c_f32_bf16 v{vS+p}, s{sONE}, v{x}")
            L.append(f"v_dot2c_f32_bf16 v{vS+2+p}, v{x}, v{x}")
            L.append(f"v_dot2c_f32_bf16 v{vS+4+p}, v{buf+16+e}, v{x}")
        return L
    def colsum(i, tmp):
        buf = WB + 32*(i % 2)
        if P["strip"] & 2: return
        for e in range(4):
            a(f"v_lshlrev_b32 v{tmp}, 16, v{buf+e}\nv_lshlrev_b32 v{tmp+1}, 16, v{buf+4+e}")
            a(f"v_and_b32 v{tmp+2}, s{sHM}, v{buf+e}\nv_and_b32 v{tmp+3}, s{sHM}, v{buf+4+e}")
            a(f"v_add_f32 v{vCS}, v{vCS}, v{tmp}\nv_add_f32 v{vCS+1}, v{vCS+1}, v{tmp+1}")
            a(f"v_add_f32 v{vCS}, v{vCS}, v{tmp+2}\nv_add_f32 v{vCS+1}, v{vCS+1}, v{tmp+3}")
    def p1_mfmas(q, isv):
        buf = WB + 32*(q % 2); L = []
        if P["strip"] & 8: return L
        for j in range(4):
            cin = "0" if (q == 0 and j == 0) else vr(ACC0,16)
            w, x = vr(buf+4*j,4), vr(XR+16*q+4*j,4)
            L.append(f"v_mfma_f32_32x32x16_bf16 {vr(ACC0,16)}, {x if isv else w}, {w if isv else x}, {cin}")
        return L
    def p2_mfmas(i):
        q = i - 8; buf = WB + 32*(i % 2); L = []
        if P["strip"] & 8: return L
        for j in range(4):
            first = (q == 0 and j == 0)
            L.append(f"v_mfma_f32_32x32x16_bf16 {vr(ACC1,16)}, {vr(buf+8*j,4)}, {vr(XR+16*q+4*j,4)}, {'0' if first else vr(ACC1,16)}")
            L.append(f"v_mfma_f32_32x32x16_bf16 {vr(ACC2,16)}, {vr(buf+8*j+4,4)}, {vr(XR+16*q+4*j,4)}, {'0' if first else vr(ACC2,16)}")
        return L
    def kv_setup():
        a(f"s_lshl_b32 s3, s{sC}, 17\ns_add_u32 s{sT2}, s3, {KBUF}\ns_lshl_b32 s{sT3}, s{sKq}, 16\ns_add_u32 s{sT2}, s{sT2}, s{sT3}")
        a(f"s_add_u32 s3, s3, {VBUF}\ns_cmp_lt_u32 s{sW}, 4\ns_cselect_b32 s{sKi0}, s{sT2}, s3")
        a(f"s_and_b32 s3, s{sW}, 1\ns_cselect_b32 s3, 6, 0\ns_lshl_b32 s{sT2}, s{sR}, 2\ns_add_u32 s3, s3, s{sT2}\ns_sub_u32 s3, s3, 8")
        a(f"s_mul_i32 s{sT3}, s{sT}, 6\ns_lshl_b32 s{sT2}, s{sR}, 3\ns_add_u32 s{sT3}, s{sT3}, s{sT2}\ns_sub_u32 s{sT3}, s{sT3}, 16")
        a(f"s_cmp_lt_u32 s{sW}, 4\ns_cselect_b32 s{sKi1}, s3, s{sT3}")
        a(f"s_lshl_b32 s3, s{sKi1}, 10\ns_add_u32 s{sKi0}, s{sKi0}, s3\ns_mul_i32 s{sKi2}, s{sW}, 6144")
    def kv_pair(e):
        a(f"s_add_u32 s{sKt}, s{sKi0}, {e*1024}\ns_cmp_lt_i32 s{sKi1}, {-e}\ns_cselect_b32 s{sKt}, 0x40000000, s{sKt}")
        a(f"s_add_u32 m0, s{sKi2}, {KL + e*1024}")
        a(f"buffer_load_dwordx4 v{vL16}, {srd(SWS)}, s{sKt} offen sc1 lds")
        return a.vm(f"buffer_load_dwordx4 v{vL16}, {srd(SWS)}, s{sKt} offen offset:1024 sc1 lds")

    PM = 128; VF = 136; vAK, vAV, vFl, vB2a, vB2b = 152, 153, 154, 155, 156
    vM, vPo, vA3 = 16, 18, 20
    PP = 160; HF = 168
    SA, SB, S0, KF, vQ, ZB, OA = 32, 48, 64, 80, 92, 96, 112
    PF = SA
    def at_setup1():
        a(f"v_mov_b32 v{PP}, 0xffff")
        for e in range(8):
            a(f"v_cndmask_b32 v{PM+e}, 0, v{PP}, s[{16+4*e}:{17+4*e}]\nv_cndmask_b32 v{PM+e}, v{PM+e}, -1, s[{18+4*e}:{19+4*e}]")
    def at_setup2a():
        for e in range(13): a(f"v_mov_b32 v{VF+e}, s{sONE}")
    def at_setup2():
        for e in range(13, 16): a(f"v_mov_b32 v{VF+e}, s{sONE}")
        a(f"s_mul_i32 s3, s{sS}, 12288\ns_lshl_b32 s{sT2}, s{sT}, 10\ns_add_u32 s3, s3, s{sT2}\ns_add_u32 s3, s3, {KL}\nv_add_u32 v{vAK}, s3, v{vL16}")
        a(f"s_lshl_b32 s3, s{sT}, 11\ns_lshl_b32 s{sT2}, s{sS}, 8\ns_add_u32 s3, s3, s{sT2}\ns_add_u32 s3, s3, {VL}\nv_and_b32 v{vAV}, 0x2f0, v{vL16}\nv_add_u32 v{vAV}, s3, v{vAV}")
    def at_setup3():
        a(f"s_lshl_b32 s3, s{sR}, 2\ns_add_u32 s3, s3, s{sTT3}\ns_lshl_b32 s3, s3, 10\ns_add_u32 s3, s3, {FL_H}\nv_bfe_u32 v{vFl}, v0, 2, 3\nv_lshl_add_u32 v{vFl}, v{vFl}, 7, s3\nv_and_b32 v{PP}, 3, v0\nv_lshl_add_u32 v{vFl}, v{PP}, 3, v{vFl}")
        a(f"s_and_b32 s3, s{sC}, 7\ns_lshl_b32 s3, s3, 7\ns_cmp_eq_u32 s{sKq}, 0\ns_cselect_b32 s3, s3, 0x40000000")
        a(f"v_lshlrev_b32 v{PP}, 1, v0\nv_lshlrev_b32 v{PP+1}, 20, v0\nv_and_b32 v{PP+1}, 0x2000000, v{PP+1}\nv_add3_u32 v{PP}, v{PP}, v{PP+1}, s3")
        a(f"buffer_load_ushort v{vB2a}, v{PP}, {srd(SB2)}, 0 offen")
        T["b2"] = a.vm(f"buffer_load_ushort v{vB2b}, v{PP}, {srd(SB2)}, 0 offen offset:64")
        a(f"s_mov_b32 s{sEX}, 0x0000ffff\ns_mov_b32 s{sEX+1}, 0x0000ffff")
    def hilo(dst, x, t0):
        a(f"v_cvt_pk_bf16_f32 v{t0}, v{x}, v{x}\nv_and_b32 v{t0}, 0xffff0000, v{t0}\nv_sub_f32 v{t0+1}, v{x}, v{t0}\nv_cvt_pk_bf16_f32 v{dst}, v{t0}, v{t0+1}")

    BA = WB + 16; AU = WB + 8
    def stage(i, isv):
        ts(f"st{i} pre", fine=True)
        if i < 16:
            t = [tagD[i]]
            if i == 0: t.append(tagGW)
            if i == 5: t.append(T["dbg"])
            a.wait(vm=t)
        ts(f"st{i} vm", fine=True)
        a("s_barrier")
        if i in (0, 8, 16): ts(f"st{i} go")
        def fill():
            if i == 9: T["st"] = a.ds(f"ds_read_b128 {vr(vT,4)}, v{vT}")
            if i == 16:
                for e in range(4): T["cs"] = a.ds(f"ds_read_b64 {vr(WB+2*e,2)}, v{vT} offset:{e*512}")
            if i == 2:
                a(f"v_readfirstlane_b32 s{sN}, v{vZ}\ns_or_b32 s3, s2, s{sW}\ns_add_u32 s{sN}, s{sN}, 1\ns_or_b32 s{sN}, s{sN}, 0x80000000")
                def go():
                    a(f"v_mov_b32 v{vT}, s{sN}")
                    lane0(f"buffer_store_dword v{vT}, off, {srd(SDBG)}, 0 sc1")
                a(f"s_cmp_eq_u32 s3, 0"); rare("s_cbranch_scc1", go, 0, 1)
                T["dbg"] = a.vm(f"buffer_load_dword v{vZ}, off, {srd(SDBG)}, 0 sc1")
            if i == 5:
                def zup(): lane0(f"buffer_store_dword v{vT}, off, {srd(SWS)}, 0 sc1")
                a(f"s_or_b32 s3, s2, s{sW}\ns_cmp_eq_u32 s3, 0"); rare("s_cbranch_scc1", zup, 0, 1)
                a(f"v_readfirstlane_b32 s3, v{vZ}\ns_mov_b32 s{sHM}, 0xffff0000\ns_cmp_eq_u32 s3, 0\ns_cselect_b32 s{sN}, s{sN}, s3\ns_xor_b32 s{sN+1}, s{sN}, 0x5bd1e995")
            if i == 0: su_b()
            if i == 1: su_c()
            if i == 3: su_d()
            if i == 4: su_e()
            if i == 6: su_f(); masks(0, 6)
            if i == 7: masks(6, 16)
            if i == 9:
                a.wait(lg=T["st"])
                s1, s2, sg = vT, vT+1, vT+2
                a(f"v_add_f32 v{s1}, v{vS}, v{s1}\nv_add_f32 v{s2}, v{vS+1}, v{s2}\nv_add_f32 v{sg}, v{vS+2}, v{sg}")
                m, sd = vMS, vMS+1
                a(f"v_mul_f32 v{m}, {hx(-1.0/512)}, v{s1}\nv_mul_f32 v{s2}, {hx(1.0/512)}, v{s2}")
                a(f"v_fma_f32 v{s2}, -v{m}, v{m}, v{s2}\nv_max_f32 v{s2}, 0, v{s2}\nv_add_f32 v{s2}, {hx(1e-5)}, v{s2}")
                a(f"v_sqrt_f32 v{sd}, v{s2}\nv_rsq_f32 v{s1}, v{s2}\nv_mul_f32 v{sg}, {hx(LOG2E)}, v{sg}")
            if i == 10:
                s1, s2, sg = vT, vT+1, vT+2; rs = s1; sd = vMS+1
                a(f"v_exp_f32 v{s2}, -v{sg}\nv_exp_f32 v{sg}, v{sg}")
                K0 = -2*0.7978845608028654*LOG2E; K1 = K0*0.044715
                a(f"v_mul_f32 v{vA01}, {hx(K0)}, v{rs}\nv_mul_f32 v{vA01+1}, v{rs}, v{rs}")
                a(f"v_mul_f32 v{vA01+1}, v{vA01+1}, v{rs}\nv_mul_f32 v{vA01+1}, {hx(K1)}, v{vA01+1}")
                a(f"v_add_f32 v{s2}, 1.0, v{s2}\nv_min_f32 v{sg}, {hx(1e30)}, v{sg}\nv_add_f32 v{sg}, 1.0, v{sg}")
                a(f"v_rcp_f32 v{vIG+1}, v{s2}\nv_mul_f32 v{vIG}, v{sd}, v{sg}\nv_rcp_f32 v{sg}, v{sg}")
                a(f"v_lshrrev_b32 v{s1}, 2, v{vL16}\nv_and_b32 v{s1}, 0x7c, v{s1}\ns_lshl_b32 s3, s{sT}, 7\ns_add_u32 s3, s3, {OMGL}\nv_add_u32 v{s1}, s3, v{s1}")
                a(f"ds_write_b32 v{s1}, v{sg}")
            if i == 11:
                a(f"v_bfe_u32 v{vT}, v0, 2, 2\nv_min_u32 v{vT}, 2, v{vT}\nv_sub_u32 v{vT}, s{sR}, v{vT}\nv_max_i32 v{vT}, 0, v{vT}")
                a(f"v_and_b32 v{vT+1}, 16, v0\nv_lshlrev_b32 v{vT+1}, 4, v{vT+1}\ns_lshl_b32 s3, s{sC}, 4\ns_add_u32 s3, s3, {FL_KV//128}\nv_add3_u32 v{vT}, v{vT}, v{vT+1}, s3\nv_lshlrev_b32 v{vT}, 7, v{vT}")
                a(f"v_and_b32 v{vT+1}, 3, v0\nv_lshl_add_u32 v{vT}, v{vT+1}, 3, v{vT}")
            if i == 12: at_setup1()
            if i == P["kvpoll"]: T["kvp"] = poll_issue(vT, vT+2)
            if i == 13: kv_setup(); at_setup2a()
            if i == 14: at_setup2(); at_setup3()
            if i == P["kvpub"]:
                if not (P["strip"] & 16): a.wait(vm=T["kv"])
                flag_store(sFl, vT); ts("kv published")
            if 8 <= i < 16 and not (P["strip"] & 1):
                a.wait(lg=T["r0"]); colsum(i, 88 if i == 8 else XR+16*(i-9))
            if i == P["kvchk"] and not (P["strip"] & 16): poll_check(T["kvp"], vT, vT+2)
            if i == 15:
                a(f"s_lshl_b32 s3, s{sW}, 9\ns_add_u32 s3, s3, {CSL}\nv_lshrrev_b32 v{vT+1}, 1, v{vL16}\nv_add_u32 v{vT}, s3, v{vT+1}")
                a(f"ds_write_b64 v{vT}, {vr(vCS,2)}")
                a(f"s_lshl_b32 s3, s{sS}, 11\ns_add_u32 s3, s3, {CSL}\nv_add_u32 v{vT}, s3, v{vT+1}")
            if i == 16:
                hilo(BA, vMS, vT); hilo(BA+2, vMS+1, vT+2)
                a(f"v_mov_b32 v{BA+1}, v{BA}\nv_mov_b32 v{BA+3}, 0")
                a.wait(lg=T["cs"], vm=T["b1"])
                for e in range(2): a(f"v_add_f32 v{WB+e}, v{WB+e}, v{WB+2+e}\nv_add_f32 v{WB+4+e}, v{WB+4+e}, v{WB+6+e}")
                for e in range(2): a(f"v_add_f32 v{WB+e}, v{WB+e}, v{WB+4+e}")
                a(f"s_mov_b32 vcc_lo, 0xffff0000\ns_mov_b32 vcc_hi, 0xffff0000\nv_cndmask_b32 v{WB}, 0, v{WB}, vcc")
                for e, (cs, b1) in enumerate(((WB, vB1a), (WB+1, vB1b))):
                    d = AU + 4*e
                    a(f"v_cvt_pk_bf16_f32 v{d}, v{cs}, v{cs}\nv_and_b32 v{d+3}, 0xffff0000, v{d}\nv_sub_f32 v{d+3}, v{cs}, v{d+3}\nv_cvt_pk_bf16_f32 v{d+1}, v{d+3}, v{d+3}")
                    a(f"v_lshl_or_b32 v{d+2}, v{b1}, 16, v{b1}\nv_mov_b32 v{d+3}, 0")
        def dmas():
            if i + 3 < 8: dma_p1(i+3)
            elif i + 3 < 16: dma_p2(i+3)
            if i == 13: dma_w3(0, 18); dma_w3(1, 8); dma_w3(2, 9)
            if i == P["kvchk"] + 1:
                for e in (0, 2): T["kvin"] = kv_pair(e)
            if i == P["kvchk"] + 2:
                T["kvin"] = kv_pair(4); dma_w3(3, 10)
            if i == 16: dma_w3(4, 11); dma_w3(5, 0); dma_w3(6, 1)
        R = a.cap(lambda: reads(i)); F = a.cap(fill); D = a.cap(dmas)
        if P["strip"] & 1: R = []
        if P["strip"] & 4: D = [x for x in D if not (isinstance(x, Ins) and x.kind == "vmem" and x not in tagD.values() and x not in tagW3.values() and x is not T.get("kvin"))]
        if i == 0: a.mix([(R, 0, 1), (D, 0, 1), (F, 0, 1)], gaps=1)
        elif i <= 8:
            a.mix([(p1_mfmas(i-1, isv), 0, 1), (R, 0, 1), (D, 0, 1), (F, 0.25 if i == 8 else 0, 1)], gaps=4)
            st = stats(i-1)
            if i == 8:
                KP = WB + 32
                for x in st[:6]: a(x)
                for e in range(8): a(f"v_cvt_pk_bf16_f32 v{KP+e}, v{ACC0+2*e}, v{ACC0+2*e+1}")
                a(f"buffer_store_dwordx4 {vr(KP,4)}, v{vL16}, {srd(SWS)}, s{sKVo0} offen sc1")
                T["kv"] = a.vm(f"buffer_store_dwordx4 {vr(KP+4,4)}, v{vL16}, {srd(SWS)}, s{sKVo1} offen sc1")
                st = st[6:]
            for x in st: a(x)
        else:
            a.mix([(p2_mfmas(i-1), 0, 1), (R, 0, 0.75), (D, 0, 0.75), (F, 0.25 if i == 15 else 0.125, 0.875)], gaps=8)
        if i == 8:
            a(f"v_add_f32 v{vS}, v{vS}, v{vS+1}\nv_add_f32 v{vS+1}, v{vS+2}, v{vS+3}\nv_add_f32 v{vS+2}, v{vS+4}, v{vS+5}")
            a(f"v_and_b32 v{vT}, 0x1f0, v{vL16}\ns_lshl_b32 s3, s{sW}, 9\ns_add_u32 s3, s3, {STL}\nv_add_u32 v{vT+1}, s3, v{vT}")
            for e in range(3): a(f"v_mov_b32 v{vS+3+e}, v{vS+e}")
            a(f"s_xor_b32 s3, s{sW}, 4\ns_lshl_b32 s3, s3, 9\ns_add_u32 s3, s3, {STL}\nv_add_u32 v{vT}, s3, v{vT}")
            for e in range(3): a(f"v_permlane32_swap_b32 v{vS+e}, v{vS+3+e}")
            for e in range(3): a(f"v_add_f32 v{vS+e}, v{vS+e}, v{vS+3+e}")
            a(f"ds_write_b128 v{vT+1}, {vr(vS,4)}")
        if i < 16: a("s_waitcnt lgkmcnt(0)")
    stage(0, False)
    a(f"s_cmp_ge_u32 s{sC}, 8\ns_cbranch_scc1 L_p1v")
    k = a.save(); st0 = (nts[0], len(TSN))
    for i in range(1, 9): stage(i, False)
    a("s_branch L_p1j")
    k2 = a.save(); a.restore(k); a.label("L_p1v")
    nts[0] = st0[0]; del TSN[st0[1]:]
    for i in range(1, 9): stage(i, True)
    a.label("L_p1j"); a.merge(k2)
    for i in range(9, 17): stage(i, False)
    a(f"v_mfma_f32_32x32x16_bf16 {vr(ACC2,16)}, {vr(AU+4,4)}, {vr(BA,4)}, {vr(ACC2,16)}")
    a(f"v_mfma_f32_32x32x16_bf16 {vr(ACC1,16)}, {vr(AU,4)}, {vr(BA,4)}, {vr(ACC1,16)}")
    ts("pass2 done")
    w3q = [(7,2),(8,3),(9,4),(10,5),(11,6),(12,7)]
    def w3next():
        if w3q: dma_w3(*w3q.pop(0))
    w3next(); w3next()
    a(f"s_lshl_b32 s{sT2}, s{sS}, 11\ns_add_u32 s{sT2}, s{sHo}, s{sT2}\ns_lshl_b32 s3, s{sS}, 10\ns_sub_u32 s{sT3}, s{sHo}, s3")
    G0 = 168; HP = 192
    src = [ACC2+2*e for e in range(8)] + [ACC1+8+2*e for e in range(4)]
    for gidx in range(3):
        ss = src[4*gidx:4*gidx+4]; tt = [G0+8*gidx+2*e for e in range(4)]
        for s_, t_ in zip(ss, tt): a(f"v_pk_mul_f32 {vr(t_,2)}, {vr(s_,2)}, {vr(s_,2)}")
        for s_, t_ in zip(ss, tt): a(f"v_pk_fma_f32 {vr(t_,2)}, {vr(t_,2)}, {vr(vA01,2)}, {vr(vA01,2)} op_sel:[0,1,0] op_sel_hi:[1,1,0]")
        for s_, t_ in zip(ss, tt): a(f"v_pk_mul_f32 {vr(t_,2)}, {vr(t_,2)}, {vr(s_,2)}")
        w3next()
        for t_ in tt: a(f"v_exp_f32 v{t_}, v{t_}\nv_exp_f32 v{t_+1}, v{t_+1}")
        w3next()
        for t_ in tt: a(f"v_pk_fma_f32 {vr(t_,2)}, {vr(t_,2)}, {vr(vIG,2)}, {vr(vIG,2)} op_sel_hi:[1,0,0]")
        for t_ in tt: a(f"v_rcp_f32 v{t_}, v{t_}\nv_rcp_f32 v{t_+1}, v{t_+1}")
        for s_, t_ in zip(ss, tt): a(f"v_pk_mul_f32 {vr(t_,2)}, {vr(t_,2)}, {vr(s_,2)}")
        for e, t_ in enumerate(tt): a(f"v_cvt_pk_bf16_f32 v{HP+4*gidx+e}, v{t_}, v{t_+1}")
        if gidx < 2: a(f"buffer_store_dwordx4 {vr(HP+4*gidx,4)}, v{vL16}, {srd(SWS)}, s{sT2} offen offset:{1024*(2+gidx)} sc1")
        else: T["h"] = a.vm(f"buffer_store_dwordx4 {vr(HP+8,4)}, v{vL16}, {srd(SWS)}, s{sT3} offen offset:1024 sc1")
    QS = 0.25*LOG2E
    a(f"s_mov_b32 s{sT2}, {hx(QS)}\ns_mov_b32 s{sT3}, {hx(QS)}")
    for e in range(4): a(f"v_pk_mul_f32 {vr(ACC1+2*e,2)}, {vr(ACC1+2*e,2)}, s[{sT2}:{sT3}]")
    for e in range(4): a(f"v_cvt_pk_bf16_f32 v{vQ+e}, v{ACC1+2*e}, v{ACC1+2*e+1}")
    ts("gelu done")
    a.wait(vm=[tagW3[P["w3go"]], T["kvin"], T["b2"]])
    a("s_barrier")
    ts("attn go")
    if P["prio"]: a("s_setprio 3")
    def kread(i, buf=None): return a.ds(f"ds_read_b128 {vr(KF+4*(i%3) if buf is None else buf,4)}, v{vAK} offset:{i*1024}")
    def zfill(val2):
        for e in range(8): a(f"v_mov_b64 {vr(ZB+2*e,2)}, {val2}")
    def zswitch(i, val2):
        a(f"s_cmp_eq_u32 s{sI0}, {i}"); rare("s_cbranch_scc1", lambda: zfill(val2), 7, 1)
    def zinit(val2):
        zfill(val2)
        def ninf():
            a(f"v_mov_b32 v{vT}, 0xff800000\nv_mov_b32 v{vT+1}, 0xff800000"); zfill(vr(vT,2))
        a(f"s_cmp_gt_u32 s{sI0}, 0"); rare("s_cbranch_scc1", ninf, 0, 1)
    def sbuf(i): return S0 if i == 0 else (SA if i % 2 else SB)
    def smfma(i, val2):
        if i > 0: zswitch(i, val2)
        a(f"v_mfma_f32_32x32x16_bf16 {vr(sbuf(i),16)}, {vr(KF+4*(i%3),4)}, {vr(vQ,4)}, {vr(ZB,16)}")
    def merge_s():
        for e in range(16): a(f"v_cndmask_b32 v{SB+e}, v{S0+e}, v{SB+e}, s[{16+2*e}:{17+2*e}]")
    def vread(i, buf):
        a(f"s_mov_b64 exec, s[{sEX}:{sEX+1}]")
        a.ds(f"ds_read_b128 {vr(VF+8*buf,4)}, v{vAV} offset:{i*2048}")
        t_ = a.ds(f"ds_read_b128 {vr(VF+8*buf+4,4)}, v{vAV} offset:{i*2048+1024}")
        a("s_mov_b64 exec, -1")
        return t_
    def passA():
        tk = {i: kread(i) for i in range(3)}
        zinit("0")
        a.wait(lg=tk[0]); smfma(0, "0"); tk[3] = kread(3)
        a.wait(lg=tk[1]); smfma(1, "0"); tk[4] = kread(4)
        for i in range(1, 9):
            if i < 8:
                a.wait(lg=tk[i+1]); smfma(i+1, "0")
                if i + 4 < 9: tk[i+4] = kread(i+4)
            else: merge_s()
            b = sbuf(i)
            for e in range(8):
                if i == 1 and e < 2: a(f"v_max_f32 v{vM+e}, v{b+2*e}, v{b+2*e+1}")
                else: a(f"v_max3_f32 v{vM+e%2}, v{b+2*e}, v{b+2*e+1}, v{vM+e%2}")
        a(f"v_max_f32 v{vM}, v{vM}, v{vM+1}")
        a(f"v_mov_b32 v{vT}, v{vM}\nv_permlane32_swap_b32 v{vM}, v{vT}\nv_max_f32 v{vM}, v{vM}, v{vT}\nv_sub_f32 v{vM}, 0, v{vM}\nv_mov_b32 v{vM+1}, v{vM}")
    def passB(tk, hook):
        m2 = vr(vM, 2)
        zinit(m2)
        a.wait(lg=tk[0]); smfma(0, m2); tk[3] = kread(3)
        a.wait(lg=tk[1]); smfma(1, m2); tk[4] = kread(4)
        tv = {1: vread(1, 1)}
        for i in range(1, 9):
            if i < 8:
                a.wait(lg=tk[i+1]); smfma(i+1, m2)
                if i + 4 < 9: tk[i+4] = kread(i+4)
                tv[i+1] = vread(i+1, (i+1) % 2)
            else:
                tv[0] = vread(0, 1)
                merge_s()
            b = sbuf(i)
            for e in range(16):
                a(f"v_exp_f32 v{b+e}, v{b+e}")
                hook(i, e)
            for e in range(8): a(f"v_cvt_pk_bf16_f32 v{PP+e}, v{b+2*e}, v{b+2*e+1}")
            if i == 8:
                for e in range(8): a(f"v_bfi_b32 v{PF+e}, v{PM+e}, 0, v{PP+e}\nv_and_b32 v{PP+e}, v{PM+e}, v{PP+e}")
            a.wait(lg=tv[i])
            vb = VF + 8*(i % 2)
            a(f"v_mfma_f32_32x32x16_bf16 {vr(OA,16)}, {vr(vb,4)}, {vr(PP,4)}, {'0' if i == 1 else vr(OA,16)}")
            a(f"v_mfma_f32_32x32x16_bf16 {vr(OA,16)}, {vr(vb+4,4)}, {vr(PP+4,4)}, {vr(OA,16)}")
            if i == 8:
                a.wait(lg=tv[0])
                a(f"v_mfma_f32_32x32x16_bf16 {vr(OA,16)}, {vr(VF+8,4)}, {vr(PF,4)}, {vr(OA,16)}")
                a(f"v_mfma_f32_32x32x16_bf16 {vr(OA,16)}, {vr(VF+12,4)}, {vr(PF+4,4)}, {vr(OA,16)}")
    t8 = kread(8, PP)
    tk = {i: kread(i) for i in range(3)}
    a(f"v_mov_b64 {vr(vM,2)}, 0")
    a.wait(lg=t8)
    for e in range(4): a(f"v_dot2c_f32_bf16 v{vM+e%2}, v{PP+e}, v{vQ+e}")
    a(f"v_add_f32 v{vM}, v{vM}, v{vM+1}")
    a(f"v_mov_b32 v{vM+1}, v{vM}\nv_permlane32_swap_b32 v{vM}, v{vM+1}\nv_add_f32 v{vM}, v{vM}, v{vM+1}\nv_sub_f32 v{vM}, 0, v{vM}\nv_mov_b32 v{vM+1}, v{vM}")
    tagA = []
    def aload():
        b = len(tagA)
        if b >= 30: return
        if b == 22: a(f"s_add_u32 s{sAct}, s{sAct}, {(96-88)*1024}")
        tagA.append(a.vm(f"buffer_load_dwordx4 {vr(HF+4*(b%22),4)}, v{vL16}, {srd(SWS)}, s{sAct} offen sc1"))
        a(f"s_add_u32 s{sAct}, s{sAct}, 4096")
    def hook(i, e):
        if P["prio"] and e == 0 and i in (3, 5, 7): a(f"s_setprio {3 - (i-1)//2}")
        if i == P["hpub"] and e == 15:
            a.wait(vm=T["h"]); flag_store(sHL, vT); ts("h published")
        if i == P["hpoll"] and e == 8: T["hp"] = poll_issue(vFl, vPo)
        if i == P["hchk"] and e == 0:
            poll_check(T["hp"], vFl, vPo); ts("h flags ok")
        if i >= P["hchk"] and e % 4 == 1: aload()
    passB(tk, hook)
    assert not w3q
    A3 = 32; W3F = 64; NB = 5; INIT = 136
    a(f"v_lshrrev_b32 v{vT}, 5, v0\nv_bfe_u32 v{vT+1}, v0, 2, 2\nv_lshl_add_u32 v{vT}, v{vT}, 2, v{vT+1}\nv_lshlrev_b32 v{vT}, 7, v{vT}")
    a(f"v_lshrrev_b32 v{vT+1}, 1, v{vT+1}\nv_lshl_add_u32 v{vT}, v{vT+1}, 6, v{vT}\nv_bfe_u32 v{vT+1}, v0, 4, 1\nv_lshl_add_u32 v{vT}, v{vT+1}, 5, v{vT}")
    a(f"v_and_b32 v{vT+1}, 3, v0\nv_lshl_add_u32 v{vT}, v{vT+1}, 3, v{vT}\ns_lshl_b32 s3, s{sKq}, 11\nv_add_u32 v{vA3}, s3, v{vT}\nv_xor_b32 v{vA3+1}, 64, v{vA3}")
    a(f"s_mov_b32 s3, {hx(2.0**30) if not P['forcefb'] else hx(1.5)}\nv_cmp_nle_f32 vcc, v{OA+8}, s3")
    def fallback():
        passA()
        tk = {i: kread(i) for i in range(3)}
        passB(tk, lambda i, e: None)
        a("s_nop 12")
    rare("s_cbranch_vccnz", fallback, 0, 1)
    a(f"v_rcp_f32 v{vT}, v{OA+8}\nv_mul_f32 v{vT}, v{vT}, v{vIG+1}")
    for e in range(4): a(f"v_pk_mul_f32 {vr(OA+2*e,2)}, {vr(OA+2*e,2)}, {vr(vT,2)} op_sel_hi:[1,0]")
    for e in range(4): a(f"v_cvt_pk_bf16_f32 v{PP+e}, v{OA+2*e}, v{OA+2*e+1}")
    T["o"] = a.vm(f"buffer_store_dwordx4 {vr(PP,4)}, v{vL16}, {srd(SWS)}, s{sOo} offen sc1")
    ts("attn done")
    if P["hchk"] > 8:
        poll_check(T["hp"], vFl, vPo)
        ts("h flags ok")
    while len(tagA) < P["hahead"]: aload()
    a(f"v_lshrrev_b32 v{vT+2}, 2, v{vL16}\nv_and_b32 v{vT+2}, 0x7c, v{vT+2}\ns_lshl_b32 s3, s{sTT3}, 7\ns_add_u32 s3, s3, {OMGL}\nv_add_u32 v{vT+2}, s3, v{vT+2}")
    tom = a.ds(f"ds_read_b32 v{vT+2}, v{vT+2}")
    win = {vA3: 0, vA3+1: 0}
    def prewin(reg, lo, hi):
        cur = win[reg]
        if not (0 <= lo - cur and hi - cur <= 65535-16):
            new = min((lo // 8192) * 8192, 98304); d = new - cur
            a(f"v_add_u32 v{reg}, {d}, v{reg}" if d >= 0 else f"v_subrev_u32 v{reg}, {-d}, v{reg}"); win[reg] = new
    def w3reads(b, buf):
        base = w3slot[b]*BLK
        for r in (vA3, vA3+1): prewin(r, base, base+1024)
        for ct in range(2):
            a.ds(f"ds_read_b64_tr_b16 {vr(buf+4*ct,2)}, v{vA3+ct} offset:{base-win[vA3+ct]}")
            t_ = a.ds(f"ds_read_b64_tr_b16 {vr(buf+4*ct+2,2)}, v{vA3+ct} offset:{base+1024-win[vA3+ct]}")
        return t_
    for e, b2 in enumerate((vB2a, vB2b)):
        d = INIT + 4*e
        a(f"v_lshl_or_b32 v{d}, v{b2}, 16, v{b2}\nv_mov_b32 v{d+1}, 0\nv_mov_b64 {vr(d+2,2)}, 0")
    a(f"v_mov_b32 v{INIT+9}, 0\nv_mov_b64 {vr(INIT+10,2)}, 0")
    a.wait(lg=tom)
    hilo(INIT+8, vT+2, vT)
    a(f"v_mfma_f32_32x32x16_bf16 {vr(A3,16)}, {vr(INIT,4)}, {vr(INIT+8,4)}, 0")
    a(f"v_mfma_f32_32x32x16_bf16 {vr(A3+16,16)}, {vr(INIT+4,4)}, {vr(INIT+8,4)}, 0")
    tr = {}
    AHEAD = 3
    sync = {5: (12, [(13,12),(14,13),(15,14),(16,15),(17,16),(18,17),(19,18),(20,8),(21,9)]),
            9: (None, [(22,0),(23,1),(24,2),(25,3)]),
            13: (18, [(26,4),(27,5),(28,6),(29,7)]),
            19: (23, []), 24: (29, [])}
    pend = []
    def issue_read(b):
        if b in sync:
            landed, ref = sync[b]
            a("s_waitcnt lgkmcnt(0)")
            if landed is not None: a.wait(vm=tagW3[landed])
            a("s_barrier")
            ts(f"X{b}")
            pend.extend(ref)
        tr[b] = w3reads(b, W3F + 8*(b % NB))
    for b in range(AHEAD): issue_read(b)
    vD = 104
    for b in range(30):
        if b + AHEAD < 30: issue_read(b + AHEAD)
        if b == P["opub"]:
            a.wait(vm=T["o"])
            a(f"s_add_u32 s{sHL}, s{sHL}, {FL_O-FL_H}")
            flag_store(sHL, vT)
            ts("o published")
        if b == P["opoll"]:
            a(f"v_add_u32 v{vFl}, {FL_O-FL_H}, v{vFl}")
            T["op"] = poll_issue(vFl, vPo)
        if b == P["ochk"]:
            poll_check(T["op"], vFl, vPo); ts("o flags ok")
        for _ in range(2):
            if (len(tagA) < 22 or b >= P["ochk"]) and len(tagA) < b + P["hahead"] + 1: aload()
        for _ in range(2):
            if pend: dma_w3(*pend.pop(0))
        if b == 20:
            a(f"v_and_b32 v{vT}, 31, v0\nv_lshlrev_b32 v{vT+1}, 8, v{vT}\ns_lshl_b32 s3, s{sW}, 13\ns_add_u32 s3, s3, {RB}\nv_add_u32 v{vT+1}, s3, v{vT+1}")
            a(f"v_and_b32 v{vT}, 7, v0\nv_lshrrev_b32 v{vT+3}, 5, v0\nv_xor_b32 v{vT}, v{vT}, v{vT+3}\nv_lshl_add_u32 v{vD}, v{vT}, 4, v{vT+1}")
            for j in range(1, 4): a(f"v_xor_b32 v{vD+j}, {32*j}, v{vD}")
        if b == 22:
            a(f"v_lshrrev_b32 v{vT}, 3, v0\nv_and_b32 v{vT+1}, 7, v0\nv_lshlrev_b32 v{vT+1}, 1, v{vT+1}\nv_xor_b32 v{vT+1}, v{vT+1}, v{vT}")
            a(f"s_lshl_b32 s3, s{sT}, 11\ns_lshl_b32 s{sT2}, s{sS}, 13\ns_add_u32 s3, s3, s{sT2}\ns_add_u32 s3, s3, {RB}")
            a(f"v_lshlrev_b32 v{vT+2}, 8, v{vT}\nv_lshl_add_u32 v{vT+2}, v{vT+1}, 4, v{vT+2}\nv_add_u32 v{vT+2}, s3, v{vT+2}\nv_xor_b32 v{vT+3}, 16, v{vT+2}")
        if b == 23:
            a(f"s_lshl_b32 s3, s{sR}, 7\ns_lshr_b32 s{sT2}, s{sC}, 3\ns_lshl_b32 s{sT2}, s{sT2}, 6\ns_add_u32 s3, s3, s{sT2}\ns_lshl_b32 s{sT2}, s{sW}, 3\ns_add_u32 s3, s3, s{sT2}\ns_lshl_b32 s3, s3, 10")
            a(f"s_and_b32 s{sT2}, s{sC}, 7\ns_lshl_b32 s{sT2}, s{sT2}, 7\ns_add_u32 s{sOo}, s3, s{sT2}")
            a(f"v_lshlrev_b32 v{vT}, 10, v{vT}\nv_and_b32 v{vT+1}, 0x70, v{vL16}\nv_add_u32 v{vT}, v{vT}, v{vT+1}")
        a.wait(vm=tagA[b], lg=tr[b])
        def mm():
            for ct in range(2):
                a(f"v_mfma_f32_32x32x16_bf16 {vr(A3+16*ct,16)}, {vr(W3F+8*(b%NB)+4*ct,4)}, {vr(HF+4*(b%22),4)}, {vr(A3+16*ct,16)}")
        if b == 21:
            lk = a.newlabel("L_sk"); a(f"s_cmp_ge_u32 s{sKq}, 2\ns_cbranch_scc1 {lk}"); k = a.save()
            mm(); a.label(lk); a.merge(k)
            ts("h gemm done")
        else: mm()
    ts("o gemm done")
    for ct in range(2):
        for j in range(4): a(f"ds_write_b128 v{vD+j}, {vr(A3+16*ct+4*j,4)} offset:{128*ct}")
    a("s_waitcnt lgkmcnt(0)\ns_barrier")
    R0 = 64
    for kq in range(4):
        a(f"ds_read_b128 {vr(R0+8*kq,4)}, v{vT+2} offset:{kq*16384}\nds_read_b128 {vr(R0+8*kq+4,4)}, v{vT+3} offset:{kq*16384}")
    a("s_waitcnt lgkmcnt(4)")
    for e in range(4): a(f"v_pk_add_f32 {vr(R0+2*e,2)}, {vr(R0+2*e,2)}, {vr(R0+8+2*e,2)}")
    a("s_waitcnt lgkmcnt(0)")
    for e in range(4): a(f"v_pk_add_f32 {vr(R0+16+2*e,2)}, {vr(R0+16+2*e,2)}, {vr(R0+24+2*e,2)}")
    for e in range(4): a(f"v_pk_add_f32 {vr(R0+2*e,2)}, {vr(R0+2*e,2)}, {vr(R0+16+2*e,2)}")
    for e in range(4): a(f"v_cvt_pk_bf16_f32 v{R0+8+e}, v{R0+2*e}, v{R0+2*e+1}")
    a(f"buffer_store_dwordx4 {vr(R0+8,4)}, v{vT}, {srd(SOUT)}, s{sOo} offen" + (" sc1" if P["outsc1"] else ""))
    if debug:
        a("s_waitcnt vmcnt(0)")
        ts("end")
        a(f"s_memrealtime s[{sTS}:{sTS+1}]\ns_waitcnt lgkmcnt(0)\nv_writelane_b32 v{vTS}, s{sTS}, 62")
        a(f"v_writelane_b32 v{vTS}, s{sSpin}, 63")
        a(f"s_lshl_b32 s3, s2, 3\ns_add_u32 s3, s3, s{sW}\ns_lshl_b32 s3, s3, 8\ns_add_u32 s3, s3, {TSB}\nv_lshlrev_b32 v{vT}, 2, v0")
        a(f"buffer_store_dword v{vTS}, v{vT}, {srd(SWS)}, s3 offen")
    a.label("L_end")
    a("s_endpgm")
    a.raw("L_hot_end:")
    i = 0
    while i < len(tail):
        tail[i](); i += 1
    a.raw(f".set CODE_LAST, L_hot_end - {NAME} - 64")
    a.raw(f""".section .rodata,"a"
.p2align 6
.amdhsa_kernel {NAME}
  .amdhsa_next_free_vgpr 256
  .amdhsa_next_free_sgpr 102
  .amdhsa_accum_offset 256
  .amdhsa_group_segment_fixed_size 0
  .amdhsa_kernarg_size 96
  .amdhsa_user_sgpr_count 2
  .amdhsa_user_sgpr_kernarg_segment_ptr 1
  .amdhsa_system_sgpr_workgroup_id_x 1
.end_amdhsa_kernel""")
    return a.finish()

if __name__ == "__main__":
    import json
    P = json.loads(sys.argv[1]) if len(sys.argv) > 1 else {}
    out = sys.argv[2] if len(sys.argv) > 2 else "gated_mix__sliding_block__mixer_channel_mlp__prompt.s"
    txt, pads = gen(False, P)
    open(out, "w").write(txt)
    txt, pads2 = gen(True, P)
    open(sys.argv[3] if len(sys.argv) > 3 else "dbg.s", "w").write(txt)
    open("dbg_ts.txt", "w").write("\n".join(TSN))
    print("pads", pads, pads2, "nts", len(TSN))
```

```python
import sys, struct
from asmlib import *
NAME = "gated_mix__sliding_block__mixer_channel_mlp__prompt_kernel"
HDR = open("gated_mix__sliding_block__mixer_channel_mlp__prompt.s.ref").read().split("; Override launch")[0]

FL_KV = 0x10000; FL_H = 0x20000; FL_O = 0x30000
KBUF = 0x40000
VBUF = KBUF + 0x200000
ACT = VBUF + 0x200000
TSB = ACT + 0x800000
WS_SIZE = TSB + 0x80000
LDS_BYTES = 163840
BLK = 8192
MISC = 19 * BLK
GWL = MISC
STL = MISC + 1024
CSL = MISC + 1024
OMGL = MISC + 5120
KL = 12 * BLK; VL = KL + 24576
RB = 10 * BLK
LOG2E = 1.4426950408889634
def f2u(f): return struct.unpack("<I", struct.pack("<f", f))[0]
def hx(f): return "0x%08x" % f2u(f)
TSN = []
DEF = dict(pf=1, fine=False, hpub=2, hpoll=5, hchk=7, prio=1, w3go=6, outsc1=False, kvpub=10, kvpoll=12, kvchk=13, hahead=8, opub=3, opoll=12, ochk=15, forcefb=False, strip=0, pfpos=dict(x=-1,q=-1,w1=-1,w2=-1,wo=-1))

def gen(debug=False, P=None):
    P = dict(DEF, **(P or {}))
    a = Asm()
    tail = []
    sW, sT, sS, sR, sC = 4, 5, 6, 7, 8
    sW1k, sW2k, sOX, sOKV, sOPa, sOPb, sPinc = 9, 10, 11, 12, 13, 14, 15
    sHM = 11
    SX, SQ, SW1, SPB, SW2, SWO, SWS, SOUT, SDBG, SB2 = 40, 44, 48, 52, 56, 60, 64, 68, 72, 76
    SGW, SB1 = 16, 20
    sKVo0, sKVo1, sHo, sOo, sAct, sOW3, sI0, sSpin, sT2, sT3, sONE, sKq = 80, 81, 82, 83, 84, 85, 86, 87, 88, 89, 90, 91
    sTS = 92; sEX = 94
    sX, sFl, sTT3, sHL = 96, 97, 98, 99
    sN = 100
    sKi0, sKi1, sKi2, sKt = 13, 14, 15, 12
    def srd(b): return f"s[{b}:{b+3}]"
    def vr(b, n): return f"v[{b}:{b+n-1}]"
    vL16, vW3, vPa, vPb, vB1a, vB1b, vTS = 1, 2, 3, 4, 5, 6, 7
    vCS = 8; vA01, vIG, vMS = 10, 12, 14; vS = 10
    vA = 16; vT = 28; WB = 32
    ACC1 = 96; ACC2 = 112; ACC0 = 112; XR = 128
    vXa, vXb, vKV, vZ, vAX, vAW, vAG = 96, 97, 98, 99, 100, 104, 108
    fL8, fS8, fL4, fSW, fRow, fH, fCH, fR4, fC8, fTok, fHR, f0, f1, f2, f3 = range(240, 255)
    nts = [0]
    del TSN[:]
    def ts(name="", fine=False):
        if not debug or (fine and not P["fine"]): return
        a(f"s_memtime s[{sTS}:{sTS+1}]\ns_waitcnt lgkmcnt(0)")
        a(f"v_writelane_b32 v{vTS}, s{sTS}, {nts[0]}")
        TSN.append(name); nts[0] += 1
    def srdw(b, n): a(f"s_mov_b32 s{b+2}, {n}\ns_mov_b32 s{b+3}, 0x00020000")
    def rare(cond_branch, body, padin=7, padout=1):
        lo, lb = a.newlabel("L_rare"), a.newlabel("L_back")
        a(f"{cond_branch} {lo}")
        a.label(lb)
        def emit():
            a.label(lo)
            a(f"s_nop {padin}")
            body()
            a(f"s_nop {padout}\ns_branch {lb}")
        tail.append(emit)
    def lane0(txt, count=True):
        a.atomic(True); a("s_mov_b64 exec, 1"); t_ = a(txt, count=count); a("s_mov_b64 exec, -1"); a.atomic(False)
        return t_

    a.raw(HDR.rstrip())
    a.raw(f"; @launch grid=(256,1,1) block=(512,1,1) lds={LDS_BYTES}")
    a.raw('.amdgcn_target "amdgcn-amd-amdhsa--gfx950"\n.text')
    a.raw(f".globl {NAME}\n.p2align 8\n.type {NAME},@function\n{NAME}:")
    a("s_cmp_ge_u32 s2, 0x100\ns_cbranch_scc1 L_end")
    a(f"s_load_dwordx2 s[{SX}:{SX+1}], s[0:1], 0\ns_load_dwordx2 s[{SQ}:{SQ+1}], s[0:1], 8\ns_load_dwordx2 s[{SGW}:{SGW+1}], s[0:1], 64")
    a(f"s_getpc_b64 s[{sEX}:{sEX+1}]")
    a("s_bfe_u32 s8, s2, 0x30003\nv_and_b32 v28, 31, v0\nv_lshlrev_b32 v28, 3, v28\nv_add_lshl_u32 v28, v28, s8, 7\nv_min_u32 v28, CODE_LAST, v28")
    a("v_cmp_gt_u32 vcc, 32, v0\ns_cbranch_vccz L_nocpf")
    a(f"global_load_dword v29, v28, s[{sEX}:{sEX+1}]", count=False)
    a.label("L_nocpf")
    a("v_lshrrev_b32 v30, 6, v0\nv_and_b32 v0, 63, v0")
    a(f"v_readfirstlane_b32 s{sW}, v30")
    a(f"s_and_b32 s3, s2, 6\ns_lshl_b32 s3, s3, 1\ns_lshr_b32 s{sR}, s2, 6\ns_add_u32 s{sR}, s{sR}, s3")
    a(f"s_and_b32 s3, s2, 1\ns_lshl_b32 s3, s3, 3\ns_add_u32 s{sC}, s{sC}, s3")
    a(f"v_lshrrev_b32 v{fL8}, 3, v0\nv_and_b32 v{fS8}, 7, v0\nv_lshrrev_b32 v{fL4}, 4, v0")
    a(f"s_lshl_b32 s{sW1k}, s{sW}, 10\ns_lshl_b32 s{sW2k}, s{sW}, 11")
    a(f"s_lshl_b32 s3, s{sR}, 3\ns_add_u32 s3, s3, s{sW}\ns_lshl_b32 s{sOX}, s3, 14")
    a(f"v_xor_b32 v{f0}, v{fS8}, v{fL4}\nv_lshlrev_b32 v{f0}, 4, v{f0}\nv_lshl_add_u32 v{vXa}, v{fL8}, 10, v{f0}")
    a(f"v_xor_b32 v{vXb}, 64, v{vXa}\nv_add_u32 v{vXb}, {8192-1024}, v{vXb}")
    a(f"v_and_b32 v{fCH}, 1, v{fL4}\nv_lshlrev_b32 v{fSW}, 2, v{fCH}\nv_xor_b32 v{fSW}, v{fSW}, v{fS8}\nv_lshlrev_b32 v{fSW}, 4, v{fSW}")
    a(f"s_mul_i32 s{sOKV}, s{sW}, {8*3072}\ns_lshl_b32 s3, s{sC}, 7\ns_add_u32 s{sOKV}, s{sOKV}, s3")
    a(f"v_mul_u32_u24 v{vKV}, 3072, v{fL8}\nv_add_u32 v{vKV}, v{vKV}, v{fSW}")
    srdw(SX, 2048*1024); srdw(SQ, 512*3072); srdw(SGW, 1024)
    a(f"s_and_b32 s{sT}, s{sW}, 3\nv_lshlrev_b32 v{f1}, 2, v0")
    a("s_waitcnt lgkmcnt(0)")
    if debug:
        a(f"v_mov_b32 v{vTS}, 0")
        a(f"s_memrealtime s[{sTS}:{sTS+1}]\ns_waitcnt lgkmcnt(0)\nv_writelane_b32 v{vTS}, s{sTS}, 61")
        ts("start")
    tagD = {}; T = {}
    def dma_p1(q):
        a(f"s_add_u32 m0, s{sW2k}, {(q%4)*2*BLK}")
        a(f"buffer_load_dwordx4 v{vXa}, {srd(SX)}, s{sOX} offen lds")
        a(f"buffer_load_dwordx4 v{vXb}, {srd(SX)}, s{sOX} offen offset:1024 lds")
        a(f"s_add_u32 m0, s{sW1k}, {(8+q%4)*BLK-1024}")
        a(f"s_add_u32 s{sOX}, s{sOX}, 128")
        tagD[q] = a.vm(f"buffer_load_dwordx4 v{vKV}, {srd(SQ)}, s{sOKV} offen offset:1024 lds")
        a(f"s_add_u32 s{sOKV}, s{sOKV}, {64*3072}")
    def dma_p2(i):
        a(f"s_add_u32 m0, s{sW2k}, {(i%4)*2*BLK}")
        a(f"buffer_load_dwordx4 v{vPa}, {srd(SW1)}, s{sOPa} offen lds")
        a(f"s_add_u32 m0, s{sW2k}, {(i%4)*2*BLK+1024}")
        a(f"s_add_u32 s{sOPa}, s{sOPa}, {64*2752}")
        tagD[i] = a.vm(f"buffer_load_dwordx4 v{vPb}, {srd(SPB)}, s{sOPb} offen lds")
        a(f"s_add_u32 s{sOPb}, s{sOPb}, s{sPinc}")
    w3slot = {}; tagW3 = {}
    def dma_w3(b, slot):
        assert b == len(w3slot)
        w3slot[b] = slot
        if b == 22: a(f"s_mov_b32 s{sOW3}, 0")
        a(f"s_add_u32 m0, s{sW1k}, {slot*BLK}")
        tagW3[b] = a.vm(f"buffer_load_dwordx4 v{vW3}, {srd(SW2 if b < 22 else SWO)}, s{sOW3} offen lds")
        a(f"s_add_u32 s{sOW3}, s{sOW3}, {64*1024}")
    dma_p1(0)
    a(f"s_lshl_b32 s3, s{sT}, 8\ns_add_u32 m0, s3, {GWL}")
    tagGW = a.vm(f"buffer_load_dword v{f1}, {srd(SGW)}, s3 offen lds")
    a(f"s_load_dwordx2 s[{SW1}:{SW1+1}], s[0:1], 32\ns_load_dwordx2 s[{SW2}:{SW2+1}], s[0:1], 48\ns_load_dwordx2 s[{SWO}:{SWO+1}], s[0:1], 16\ns_load_dwordx2 s[{SWS}:{SWS+1}], s[0:1], 88")
    a(f"s_load_dwordx2 s[{SOUT}:{SOUT+1}], s[0:1], 72\ns_load_dwordx2 s[{SB1}:{SB1+1}], s[0:1], 40\ns_load_dwordx2 s[{SB2}:{SB2+1}], s[0:1], 56")
    def pf(which):
        if not P["pf"] or not which: return
        lend = a.newlabel("L_pfe")
        def x_():
            a(f"s_lshr_b32 s{sT2}, s2, 3\ns_and_b32 s3, s2, 7\ns_lshl_b32 s3, s3, 5\ns_add_u32 s3, s3, s{sT2}\ns_lshl_b32 s3, s3, 13\nv_lshlrev_b32 v{f0}, 7, v0")
            a(f"buffer_load_dword v31, v{f0}, {srd(SX)}, s3 offen", count=False)
        def up():
            a(f"s_lshr_b32 s{sT2}, s2, 3\ns_bfe_u32 s{sT3}, s2, 0x20001\ns_lshl_b32 s{sT3}, s{sT3}, 5\ns_add_u32 s{sT3}, s{sT3}, s{sT2}\ns_and_b32 s{sT2}, s2, 1")
            a(f"s_lshl_b32 s3, s{sT3}, 2\nv_add_u32 v{f0}, s3, v{fL4}")
        def q_():
            up()
            a(f"v_mul_u32_u24 v{f0}, 3072, v{f0}")
            a(f"s_lshl_b32 s3, s{sT2}, 10\ns_add_u32 s3, s3, 1024\nv_lshl_add_u32 v{f1}, v{fS8}, 7, s3")
            a(f"s_lshl_b32 s3, s{sT2}, 9\nv_and_b32 v{f2}, 3, v0\nv_lshl_add_u32 v{f2}, v{f2}, 7, s3\nv_and_b32 v{f3}, 8, v0\nv_cmp_eq_u32 vcc, 0, v{f3}\nv_cndmask_b32 v{f1}, v{f2}, v{f1}, vcc\nv_add_u32 v{f0}, v{f0}, v{f1}")
            a(f"buffer_load_dword v31, v{f0}, {srd(SQ)}, 0 offen", count=False)
        def w1_():
            up()
            a(f"v_mul_u32_u24 v{f0}, 2752, v{f0}")
            a(f"v_and_b32 v{f1}, 15, v0\nv_lshlrev_b32 v{f1}, 7, v{f1}\nv_min_u32 v{f1}, 1532, v{f1}\ns_mul_i32 s3, s{sT2}, 1536\nv_add_u32 v{f1}, s3, v{f1}\nv_min_u32 v{f1}, 2748, v{f1}\nv_add_u32 v{f0}, v{f0}, v{f1}")
            a(f"buffer_load_dword v31, v{f0}, {srd(SW1)}, 0 offen", count=False)
        def w2_():
            a(f"s_mul_i32 s3, s2, {43*128}\nv_min_u32 v{f0}, 42, v0\nv_lshlrev_b32 v{f0}, 7, v{f0}")
            a(f"buffer_load_dword v31, v{f0}, {srd(SW2)}, s3 offen", count=False)
        def wo_():
            a(f"s_lshl_b32 s3, s2, 11\nv_and_b32 v{f0}, 15, v0\nv_lshlrev_b32 v{f0}, 7, v{f0}")
            a(f"buffer_load_dword v31, v{f0}, {srd(SWO)}, s3 offen", count=False)
        F = dict(x=x_, q=q_, w1=w1_, w2=w2_, wo=wo_)
        a.atomic(True)
        for n, k in enumerate(which):
            ln = a.newlabel("L_pf")
            a(f"s_cmp_lg_u32 s{sW}, {n}\ns_cbranch_scc1 {ln}")
            F[k]()
            a(f"s_branch {lend}")
            a.label(ln)
        a.label(lend)
        a("s_nop 0")
        a.atomic(False)
    def pfat(pos): return [k for k in ("x","q","w1","w2","wo") if P["pfpos"][k] == pos]
    a("s_barrier")
    if pfat(-2): pf(pfat(-2)); a("s_barrier")
    dma_p1(1)
    ts("d1 issued")
    srdw(SW1, 512*2752); srdw(SW2, 1376*1024); srdw(SWO, 512*1024); srdw(SWS, WS_SIZE)
    a("s_waitcnt lgkmcnt(0)\ns_barrier")
    pf(pfat(-1))
    a(f"s_lshr_b32 s{sS}, s{sW}, 2\ns_lshl_b32 s{sX}, s{sS}, 1\ns_xor_b32 s{sX}, s{sX}, s{sT}")
    a(f"v_lshrrev_b32 v{fH}, 5, v0\nv_bfe_u32 v{fR4}, v0, 2, 2\nv_and_b32 v{fC8}, 3, v0\nv_lshlrev_b32 v{fC8}, 3, v{fC8}\nv_and_b32 v{fTok}, 31, v0\nv_lshl_add_u32 v{fHR}, v{fH}, 3, v{fR4}")
    a(f"s_lshl_b32 s3, s{sT}, 5\nv_add_lshl_u32 v{f0}, v{fTok}, s3, 7\nv_bfe_u32 v{f1}, v{fTok}, 1, 3\ns_lshl_b32 s3, s{sX}, 1\nv_xor_b32 v{f1}, v{f1}, v{fH}\nv_xor_b32 v{f1}, s3, v{f1}")
    a(f"v_lshl_add_u32 v{vAX}, v{f1}, 4, v{f0}")
    for j in range(1, 4): a(f"v_xor_b32 v{vAX+j}, {32*j}, v{vAX}")
    a(f"v_lshrrev_b32 v{f1}, 1, v{fR4}\nv_xor_b32 v{f1}, s{sS}, v{f1}\nv_lshl_add_u32 v{f2}, v{fCH}, 5, v{fC8}\nv_lshl_add_u32 v{f1}, v{f1}, 6, v{f2}")
    a(f"s_lshl_b32 s3, s{sX}, 11\ns_add_u32 s3, s3, {8*BLK}\nv_lshl_add_u32 v{f1}, v{fHR}, 7, v{f1}\nv_add_u32 v{vAW}, s3, v{f1}")
    for j in range(1, 4): a(f"v_xor_b32 v{vAW+j}, {j*2048}, v{vAW}")
    a(f"s_lshl_b32 s3, s{sX}, 5\ns_add_u32 s3, s3, {GWL}\nv_lshl_add_u32 v{vAG}, v{fH}, 4, s3\nv_xor_b32 v{vAG+1}, 32, v{vAG}")
    a(f"buffer_load_dword v{vZ}, off, {srd(SWS)}, 0 sc1")
    dma_p1(2)
    ts("d2 issued")

    def su_a():
        a(f"s_mov_b32 s{sONE}, 0x3f803f80\ns_lshr_b32 s{sKq}, s{sW}, 1\nv_lshlrev_b32 v{vL16}, 4, v0")
        for e in range(3): a(f"v_mov_b64 {vr(vS+2*e,2)}, 0")
        a(f"v_mov_b64 {vr(vCS,2)}, 0")
        srdw(SOUT, 2048*1024); srdw(SB1, 2752); srdw(SB2, 1024)
        a(f"s_bitcmp1_b32 s{sW}, 0")
        a(f"s_cselect_b64 s[{SPB}:{SPB+1}], s[{SQ}:{SQ+1}], s[{SW1}:{SW1+1}]")
        a(f"s_cselect_b32 s{SPB+2}, s{SQ+2}, s{SW1+2}\ns_mov_b32 s{SPB+3}, 0x00020000")
        a(f"s_mov_b32 s{sT2}, 3072\ns_mov_b32 s{sT3}, 2752\ns_cselect_b32 s{sPinc}, s{sT2}, s{sT3}")
        a(f"s_cselect_b32 s{sT2}, 64, 192\ns_mul_i32 s{sT2}, s{sT2}, s{sC}\ns_mul_i32 s{sOPb}, s{sPinc}, s{sKq}\ns_lshl_b32 s{sOPb}, s{sOPb}, 4\ns_add_u32 s{sOPb}, s{sOPb}, s{sT2}\ns_lshl_b32 s{sPinc}, s{sPinc}, 6")
        a(f"s_mul_i32 s{sOPa}, s{sKq}, {16*2752}\ns_mul_i32 s3, s{sC}, 192\ns_add_u32 s{sOPa}, s{sOPa}, s3")
    def su_b():
        def w1off(dst, i):
            a(f"v_mul_u32_u24 v{f1}, 171, v{i}\nv_lshrrev_b32 v{f1}, 11, v{f1}")
            a(f"v_mul_u32_u24 v{f2}, {2752-192}, v{f1}\nv_lshl_add_u32 v{dst}, v{i}, 4, v{f2}")
        a(f"s_and_b32 s3, s{sW}, 1\ns_lshl_b32 s3, s3, 7\nv_add_u32 v{f0}, s3, v0")
        w1off(vPa, f0)
        a(f"v_add_u32 v{f0}, 64, v0")
        w1off(vPb, f0)
        a(f"v_lshrrev_b32 v{f0}, 2, v0\nv_mul_u32_u24 v{f0}, 3072, v{f0}\nv_lshl_add_u32 v{f0}, v{fC8}, 1, v{f0}")
        a(f"s_bitcmp1_b32 s{sW}, 0\ns_cselect_b64 vcc, -1, 0\nv_cndmask_b32 v{vPb}, v{vPb}, v{f0}, vcc")
        a(f"s_and_b32 s3, s{sC}, 7\ns_lshl_b32 s3, s3, 7\ns_lshl_b32 s{sT2}, s{sW}, 13\ns_add_u32 s3, s3, s{sT2}\nv_lshl_add_u32 v{vW3}, v{fL8}, 10, v{fSW}\nv_add_u32 v{vW3}, s3, v{vW3}\ns_mov_b32 s{sOW3}, 0")
    def su_c():
        a(f"s_lshl_b32 s{sT2}, s{sX}, 12\ns_lshl_b32 s{sT3}, s{sS}, 5")
        a(f"v_mul_u32_u24 v{f0}, 192, v{fHR}\nv_add3_u32 v{f0}, v{f0}, v{fC8}, s{sT2}")
        a(f"s_lshl_b32 s3, s{sS}, 6\ns_add_u32 s3, s3, 64\nv_lshl_add_u32 v{f1}, v{fCH}, 5, s3\nv_add_u32 v{vA+8}, v{f0}, v{f1}")
        a(f"s_add_u32 s3, s{sT2}, s{sT3}\ns_add_u32 s3, s3, 3072\nv_lshl_add_u32 v{f1}, v{fHR}, 6, v{fC8}\nv_add_u32 v{f1}, s3, v{f1}")
        a(f"s_sub_u32 s3, 32, s{sT3}\nv_add_u32 v{f2}, s3, v{f0}\nv_cmp_eq_u32 vcc, 1, v{fCH}")
        a(f"v_lshl_add_u32 v{f3}, v{fCH}, 9, 0\nv_cndmask_b32 v{vA}, v{f1}, v{f2}, vcc\nv_add_u32 v{f3}, 256, v{f3}\nv_add_u32 v{vA+4}, v{vA}, v{f3}")
        for k in range(3):
            for j in range(1, 4): a(f"v_xor_b32 v{vA+4*k+j}, {j*4096}, v{vA+4*k}")
    def su_d():
        a(f"v_mov_b32 v{f3}, 0x40000000")
        a(f"s_mul_i32 s3, s{sC}, 6\ns_sub_u32 s3, s3, s{sS}\ns_lshl_b32 s3, s3, 5")
        a(f"v_lshl_add_u32 v{f0}, v{fTok}, 1, s3\nv_cmp_eq_u32 vcc, 1, v{fL4}\nv_cndmask_b32 v{f0}, v{f3}, v{f0}, vcc")
        a(f"buffer_load_ushort v{vB1a}, v{f0}, {srd(SB1)}, 0 offen")
        a(f"s_mul_i32 s3, s{sC}, 3\ns_add_u32 s3, s3, s{sS}\ns_add_u32 s3, s3, 1\ns_lshl_b32 s3, s3, 6")
        a(f"v_lshl_add_u32 v{f1}, v{fTok}, 1, s3\nv_lshl_add_u32 v{f1}, v{fH}, 25, v{f1}")
        T["b1"] = a.vm(f"buffer_load_ushort v{vB1b}, v{f1}, {srd(SB1)}, 0 offen")
    def su_e():
        a(f"s_lshl_b32 s{sT2}, s{sR}, 2\ns_add_u32 s{sT2}, s{sT2}, s{sT}")
        a(f"s_lshl_b32 s{sAct}, s{sC}, 1\ns_add_u32 s{sAct}, s{sAct}, s{sS}")
        a(f"s_lshl_b32 s{sT3}, s{sAct}, 17\ns_add_u32 s{sKVo0}, s{sT3}, {KBUF}")
        a(f"s_cmp_lt_u32 s{sC}, 8\ns_cselect_b32 s{sT3}, 10, 11\ns_cselect_b32 s3, 16, 10\ns_lshl_b32 s{sT3}, s{sT2}, s{sT3}\ns_add_u32 s{sKVo0}, s{sKVo0}, s{sT3}")
        a(f"s_lshl_b32 s3, 1, s3\ns_add_u32 s{sKVo1}, s{sKVo0}, s3")
        a(f"s_lshl_b32 s{sFl}, s{sAct}, 4\ns_add_u32 s{sFl}, s{sFl}, s{sR}\ns_lshl_b32 s{sFl}, s{sFl}, 7\ns_lshl_b32 s{sT3}, s{sT}, 3\ns_add_u32 s{sFl}, s{sFl}, s{sT3}\ns_add_u32 s{sFl}, s{sFl}, {FL_KV}")
        a(f"s_lshl_b32 s{sHL}, s{sT2}, 3\ns_lshr_b32 s{sT3}, s{sC}, 1\ns_add_u32 s{sHL}, s{sHL}, s{sT3}\ns_lshl_b32 s{sHL}, s{sHL}, 7\ns_and_b32 s{sT3}, s{sAct}, 3\ns_lshl_b32 s{sT3}, s{sT3}, 3\ns_add_u32 s{sHL}, s{sHL}, s{sT3}\ns_add_u32 s{sHL}, s{sHL}, {FL_H}")
        a(f"s_sub_i32 s{sI0}, 8, s{sT2}\ns_max_i32 s{sI0}, s{sI0}, 0")
        a(f"s_lshl_b32 s{sT3}, s{sT2}, 17\ns_add_u32 s{sT3}, s{sT3}, {ACT}")
        a(f"s_lshl_b32 s3, s{sAct}, 10\ns_add_u32 s{sOo}, s{sT3}, s3\ns_add_u32 s{sOo}, s{sOo}, {96*1024}")
        a(f"s_mul_i32 s3, s{sC}, {6*1024}\ns_add_u32 s{sHo}, s{sT3}, s3")
    def su_f():
        a(f"s_mov_b32 s{sSpin}, 0x40000")
        a(f"s_lshr_b32 s3, s{sC}, 3\ns_lshl_b32 s3, s3, 1\ns_and_b32 s{sTT3}, s{sW}, 1\ns_add_u32 s{sTT3}, s{sTT3}, s3")
        a(f"s_lshl_b32 s3, s{sR}, 2\ns_add_u32 s3, s3, s{sTT3}\ns_lshl_b32 s3, s3, 17\ns_add_u32 s{sAct}, s3, {ACT}\ns_lshl_b32 s3, s{sKq}, 10\ns_add_u32 s{sAct}, s{sAct}, s3")
    def masks(lo, hi):
        for i in range(lo, hi):
            m = 0
            for l in range(64):
                if 8*(i//4) + 4*(l//32) + i % 4 <= l % 32: m |= 1 << l
            a(f"s_mov_b32 s{16+2*i}, 0x{m & 0xffffffff:08x}\ns_mov_b32 s{17+2*i}, 0x{m >> 32:08x}")
    su_a()

    def flag_store(soff, tmp):
        a(f"v_mov_b64 {vr(tmp,2)}, s[{sN}:{sN+1}]")
        return lane0(f"buffer_store_dwordx2 {vr(tmp,2)}, off, {srd(SWS)}, s{soff} sc1")
    def poll_issue(voff, vtmp):
        return a.vm(f"buffer_load_dwordx2 {vr(vtmp,2)}, v{voff}, {srd(SWS)}, 0 offen sc1")
    def poll_check(tag, voff, vtmp):
        a.wait(vm=tag)
        a(f"v_cmp_ne_u64 vcc, s[{sN}:{sN+1}], {vr(vtmp,2)}")
        def slow():
            lp, dn = a.newlabel("L_poll"), a.newlabel("L_polld")
            a.label(lp)
            a(f"buffer_load_dwordx2 {vr(vtmp,2)}, v{voff}, {srd(SWS)}, 0 offen sc1")
            a(f"s_waitcnt vmcnt(0)\nv_cmp_ne_u64 vcc, s[{sN}:{sN+1}], {vr(vtmp,2)}\ns_cbranch_vccz {dn}")
            a(f"s_sleep 2\ns_sub_u32 s{sSpin}, s{sSpin}, 1\ns_cbranch_scc0 {lp}")
            a(f"s_mov_b32 s{sSpin}, 0")
            a.label(dn)
        rare("s_cbranch_vccnz", slow, 0, 0)

    def reads(i):
        buf = WB + 32*(i % 2)
        if i < 8:
            for j in range(4):
                a(f"ds_read_b128 {vr(XR+16*i+4*j,4)}, v{vAX+j} offset:{(i%4)*2*BLK}")
                a(f"ds_read_b64_tr_b16 {vr(buf+4*j,2)}, v{vAW+j} offset:{(i%4)*BLK}")
                a(f"ds_read_b64_tr_b16 {vr(buf+4*j+2,2)}, v{vAW+j} offset:{(i%4)*BLK+512}")
            for j in range(2): a(f"ds_read_b128 {vr(buf+16+4*j,4)}, v{vAG+j} offset:{i*128}")
        elif i < 16:
            base = (i % 4)*2*BLK
            for j in range(4):
                a(f"ds_read_b64_tr_b16 {vr(buf+8*j,2)}, v{vA+j} offset:{base}")
                a(f"ds_read_b64_tr_b16 {vr(buf+8*j+2,2)}, v{vA+4+j} offset:{base}")
                a(f"ds_read_b64_tr_b16 {vr(buf+8*j+4,2)}, v{vA+8+j} offset:{base}")
                t_ = a(f"ds_read_b64_tr_b16 {vr(buf+8*j+6,2)}, v{vA+8+j} offset:{base+768}")
                if j == 0: T["r0"] = t_
    def stats(q):
        buf = WB + 32*(q % 2); L = []
        if P["strip"] & 2: return L
        for e in range(8):
            x = XR+16*q+e; p = e % 2
            L.append(f"v_dot2c_f32_bf16 v{vS+p}, s{sONE}, v{x}")
            L.append(f"v_dot2c_f32_bf16 v{vS+2+p}, v{x}, v{x}")
            L.append(f"v_dot2c_f32_bf16 v{vS+4+p}, v{buf+16+e}, v{x}")
        return L
    def colsum(i, tmp):
        buf = WB + 32*(i % 2)
        if P["strip"] & 2: return
        for e in range(4):
            a(f"v_lshlrev_b32 v{tmp}, 16, v{buf+e}\nv_lshlrev_b32 v{tmp+1}, 16, v{buf+4+e}")
            a(f"v_and_b32 v{tmp+2}, s{sHM}, v{buf+e}\nv_and_b32 v{tmp+3}, s{sHM}, v{buf+4+e}")
            a(f"v_add_f32 v{vCS}, v{vCS}, v{tmp}\nv_add_f32 v{vCS+1}, v{vCS+1}, v{tmp+1}")
            a(f"v_add_f32 v{vCS}, v{vCS}, v{tmp+2}\nv_add_f32 v{vCS+1}, v{vCS+1}, v{tmp+3}")
    def p1_mfmas(q, isv):
        buf = WB + 32*(q % 2); L = []
        if P["strip"] & 8: return L
        for j in range(4):
            cin = "0" if (q == 0 and j == 0) else vr(ACC0,16)
            w, x = vr(buf+4*j,4), vr(XR+16*q+4*j,4)
            L.append(f"v_mfma_f32_32x32x16_bf16 {vr(ACC0,16)}, {x if isv else w}, {w if isv else x}, {cin}")
        return L
    def p2_mfmas(i):
        q = i - 8; buf = WB + 32*(i % 2); L = []
        if P["strip"] & 8: return L
        for j in range(4):
            first = (q == 0 and j == 0)
            L.append(f"v_mfma_f32_32x32x16_bf16 {vr(ACC1,16)}, {vr(buf+8*j,4)}, {vr(XR+16*q+4*j,4)}, {'0' if first else vr(ACC1,16)}")
            L.append(f"v_mfma_f32_32x32x16_bf16 {vr(ACC2,16)}, {vr(buf+8*j+4,4)}, {vr(XR+16*q+4*j,4)}, {'0' if first else vr(ACC2,16)}")
        return L
    def kv_setup():
        a(f"s_lshl_b32 s3, s{sC}, 17\ns_add_u32 s{sT2}, s3, {KBUF}\ns_lshl_b32 s{sT3}, s{sKq}, 16\ns_add_u32 s{sT2}, s{sT2}, s{sT3}")
        a(f"s_add_u32 s3, s3, {VBUF}\ns_cmp_lt_u32 s{sW}, 4\ns_cselect_b32 s{sKi0}, s{sT2}, s3")
        a(f"s_and_b32 s3, s{sW}, 1\ns_cselect_b32 s3, 6, 0\ns_lshl_b32 s{sT2}, s{sR}, 2\ns_add_u32 s3, s3, s{sT2}\ns_sub_u32 s3, s3, 8")
        a(f"s_mul_i32 s{sT3}, s{sT}, 6\ns_lshl_b32 s{sT2}, s{sR}, 3\ns_add_u32 s{sT3}, s{sT3}, s{sT2}\ns_sub_u32 s{sT3}, s{sT3}, 16")
        a(f"s_cmp_lt_u32 s{sW}, 4\ns_cselect_b32 s{sKi1}, s3, s{sT3}")
        a(f"s_lshl_b32 s3, s{sKi1}, 10\ns_add_u32 s{sKi0}, s{sKi0}, s3\ns_mul_i32 s{sKi2}, s{sW}, 6144")
    def kv_pair(e):
        a(f"s_add_u32 s{sKt}, s{sKi0}, {e*1024}\ns_cmp_lt_i32 s{sKi1}, {-e}\ns_cselect_b32 s{sKt}, 0x40000000, s{sKt}")
        a(f"s_add_u32 m0, s{sKi2}, {KL + e*1024}")
        a(f"buffer_load_dwordx4 v{vL16}, {srd(SWS)}, s{sKt} offen sc1 lds")
        return a.vm(f"buffer_load_dwordx4 v{vL16}, {srd(SWS)}, s{sKt} offen offset:1024 sc1 lds")

    PM = 128; VF = 136; vAK, vAV, vFl, vB2a, vB2b = 152, 153, 154, 155, 156
    vM, vPo, vA3 = 16, 18, 20
    PP = 160; HF = 168
    SA, SB, S0, KF, vQ, ZB, OA = 32, 48, 64, 80, 92, 96, 112
    PF = SA
    def at_setup1():
        a(f"v_mov_b32 v{PP}, 0xffff")
        for e in range(8):
            a(f"v_cndmask_b32 v{PM+e}, 0, v{PP}, s[{16+4*e}:{17+4*e}]\nv_cndmask_b32 v{PM+e}, v{PM+e}, -1, s[{18+4*e}:{19+4*e}]")
    def at_setup2a():
        for e in range(13): a(f"v_mov_b32 v{VF+e}, s{sONE}")
    def at_setup2():
        for e in range(13, 16): a(f"v_mov_b32 v{VF+e}, s{sONE}")
        a(f"s_mul_i32 s3, s{sS}, 12288\ns_lshl_b32 s{sT2}, s{sT}, 10\ns_add_u32 s3, s3, s{sT2}\ns_add_u32 s3, s3, {KL}\nv_add_u32 v{vAK}, s3, v{vL16}")
        a(f"s_lshl_b32 s3, s{sT}, 11\ns_lshl_b32 s{sT2}, s{sS}, 8\ns_add_u32 s3, s3, s{sT2}\ns_add_u32 s3, s3, {VL}\nv_and_b32 v{vAV}, 0x2f0, v{vL16}\nv_add_u32 v{vAV}, s3, v{vAV}")
    def at_setup3():
        a(f"s_lshl_b32 s3, s{sR}, 2\ns_add_u32 s3, s3, s{sTT3}\ns_lshl_b32 s3, s3, 10\ns_add_u32 s3, s3, {FL_H}\nv_bfe_u32 v{vFl}, v0, 2, 3\nv_lshl_add_u32 v{vFl}, v{vFl}, 7, s3\nv_and_b32 v{PP}, 3, v0\nv_lshl_add_u32 v{vFl}, v{PP}, 3, v{vFl}")
        a(f"s_and_b32 s3, s{sC}, 7\ns_lshl_b32 s3, s3, 7\ns_cmp_eq_u32 s{sKq}, 0\ns_cselect_b32 s3, s3, 0x40000000")
        a(f"v_lshlrev_b32 v{PP}, 1, v0\nv_lshlrev_b32 v{PP+1}, 20, v0\nv_and_b32 v{PP+1}, 0x2000000, v{PP+1}\nv_add3_u32 v{PP}, v{PP}, v{PP+1}, s3")
        a(f"buffer_load_ushort v{vB2a}, v{PP}, {srd(SB2)}, 0 offen")
        T["b2"] = a.vm(f"buffer_load_ushort v{vB2b}, v{PP}, {srd(SB2)}, 0 offen offset:64")
        a(f"s_mov_b32 s{sEX}, 0x0000ffff\ns_mov_b32 s{sEX+1}, 0x0000ffff")
    def hilo(dst, x, t0):
        a(f"v_cvt_pk_bf16_f32 v{t0}, v{x}, v{x}\nv_and_b32 v{t0}, 0xffff0000, v{t0}\nv_sub_f32 v{t0+1}, v{x}, v{t0}\nv_cvt_pk_bf16_f32 v{dst}, v{t0}, v{t0+1}")

    BA = WB + 16; AU = WB + 8
    def stage(i, isv):
        ts(f"st{i} pre", fine=True)
        if i < 16:
            t = [tagD[i]]
            if i == 0: t.append(tagGW)
            a.wait(vm=t)
        ts(f"st{i} vm", fine=True)
        a("s_barrier")
        if i in (0, 8, 16): ts(f"st{i} go")
        def fill():
            pf(pfat(i))
            if i == 9: T["st"] = a.ds(f"ds_read_b128 {vr(vT,4)}, v{vT}")
            if i == 16:
                for e in range(4): T["cs"] = a.ds(f"ds_read_b64 {vr(WB+2*e,2)}, v{vT} offset:{e*512}")
            if i == 2:
                a(f"v_readfirstlane_b32 s{sN}, v{vZ}\ns_add_u32 s{sN}, s{sN}, 1\ns_xor_b32 s{sN+1}, s{sN}, 0x5bd1e995")
            if i == 5: a(f"s_mov_b32 s{sHM}, 0xffff0000")
            if i == 0: su_b()
            if i == 1: su_c()
            if i == 3: su_d()
            if i == 4: su_e()
            if i == 6: su_f(); masks(0, 6)
            if i == 7: masks(6, 16)
            if i == 9:
                a.wait(lg=T["st"])
                s1, s2, sg = vT, vT+1, vT+2
                a(f"v_add_f32 v{s1}, v{vS}, v{s1}\nv_add_f32 v{s2}, v{vS+1}, v{s2}\nv_add_f32 v{sg}, v{vS+2}, v{sg}")
                m, sd = vMS, vMS+1
                a(f"v_mul_f32 v{m}, {hx(-1.0/512)}, v{s1}\nv_mul_f32 v{s2}, {hx(1.0/512)}, v{s2}")
                a(f"v_fma_f32 v{s2}, -v{m}, v{m}, v{s2}\nv_max_f32 v{s2}, 0, v{s2}\nv_add_f32 v{s2}, {hx(1e-5)}, v{s2}")
                a(f"v_sqrt_f32 v{sd}, v{s2}\nv_rsq_f32 v{s1}, v{s2}\nv_mul_f32 v{sg}, {hx(LOG2E)}, v{sg}")
            if i == 10:
                s1, s2, sg = vT, vT+1, vT+2; rs = s1; sd = vMS+1
                a(f"v_exp_f32 v{s2}, -v{sg}\nv_exp_f32 v{sg}, v{sg}")
                K0 = -2*0.7978845608028654*LOG2E; K1 = K0*0.044715
                a(f"v_mul_f32 v{vA01}, {hx(K0)}, v{rs}\nv_mul_f32 v{vA01+1}, v{rs}, v{rs}")
                a(f"v_mul_f32 v{vA01+1}, v{vA01+1}, v{rs}\nv_mul_f32 v{vA01+1}, {hx(K1)}, v{vA01+1}")
                a(f"v_add_f32 v{s2}, 1.0, v{s2}\nv_min_f32 v{sg}, {hx(1e30)}, v{sg}\nv_add_f32 v{sg}, 1.0, v{sg}")
                a(f"v_rcp_f32 v{vIG+1}, v{s2}\nv_mul_f32 v{vIG}, v{sd}, v{sg}\nv_rcp_f32 v{sg}, v{sg}")
                a(f"v_lshrrev_b32 v{s1}, 2, v{vL16}\nv_and_b32 v{s1}, 0x7c, v{s1}\ns_lshl_b32 s3, s{sT}, 7\ns_add_u32 s3, s3, {OMGL}\nv_add_u32 v{s1}, s3, v{s1}")
                a(f"ds_write_b32 v{s1}, v{sg}")
            if i == 11:
                a(f"v_bfe_u32 v{vT}, v0, 2, 2\nv_min_u32 v{vT}, 2, v{vT}\nv_sub_u32 v{vT}, s{sR}, v{vT}\nv_max_i32 v{vT}, 0, v{vT}")
                a(f"v_and_b32 v{vT+1}, 16, v0\nv_lshlrev_b32 v{vT+1}, 4, v{vT+1}\ns_lshl_b32 s3, s{sC}, 4\ns_add_u32 s3, s3, {FL_KV//128}\nv_add3_u32 v{vT}, v{vT}, v{vT+1}, s3\nv_lshlrev_b32 v{vT}, 7, v{vT}")
                a(f"v_and_b32 v{vT+1}, 3, v0\nv_lshl_add_u32 v{vT}, v{vT+1}, 3, v{vT}")
            if i == 12: at_setup1()
            if i == P["kvpoll"]: T["kvp"] = poll_issue(vT, vT+2)
            if i == 13: kv_setup(); at_setup2a()
            if i == 14: at_setup2(); at_setup3()
            if i == P["kvpub"]:
                if not (P["strip"] & 16): a.wait(vm=T["kv"])
                flag_store(sFl, vT); ts("kv published")
            if 8 <= i < 16 and not (P["strip"] & 1):
                a.wait(lg=T["r0"]); colsum(i, 88 if i == 8 else XR+16*(i-9))
            if i == P["kvchk"] and not (P["strip"] & 16): poll_check(T["kvp"], vT, vT+2)
            if i == 15:
                a(f"s_lshl_b32 s3, s{sW}, 9\ns_add_u32 s3, s3, {CSL}\nv_lshrrev_b32 v{vT+1}, 1, v{vL16}\nv_add_u32 v{vT}, s3, v{vT+1}")
                a(f"ds_write_b64 v{vT}, {vr(vCS,2)}")
                a(f"s_lshl_b32 s3, s{sS}, 11\ns_add_u32 s3, s3, {CSL}\nv_add_u32 v{vT}, s3, v{vT+1}")
            if i == 16:
                hilo(BA, vMS, vT); hilo(BA+2, vMS+1, vT+2)
                a(f"v_mov_b32 v{BA+1}, v{BA}\nv_mov_b32 v{BA+3}, 0")
                a.wait(lg=T["cs"], vm=T["b1"])
                for e in range(2): a(f"v_add_f32 v{WB+e}, v{WB+e}, v{WB+2+e}\nv_add_f32 v{WB+4+e}, v{WB+4+e}, v{WB+6+e}")
                for e in range(2): a(f"v_add_f32 v{WB+e}, v{WB+e}, v{WB+4+e}")
                a(f"s_mov_b32 vcc_lo, 0xffff0000\ns_mov_b32 vcc_hi, 0xffff0000\nv_cndmask_b32 v{WB}, 0, v{WB}, vcc")
                for e, (cs, b1) in enumerate(((WB, vB1a), (WB+1, vB1b))):
                    d = AU + 4*e
                    a(f"v_cvt_pk_bf16_f32 v{d}, v{cs}, v{cs}\nv_and_b32 v{d+3}, 0xffff0000, v{d}\nv_sub_f32 v{d+3}, v{cs}, v{d+3}\nv_cvt_pk_bf16_f32 v{d+1}, v{d+3}, v{d+3}")
                    a(f"v_lshl_or_b32 v{d+2}, v{b1}, 16, v{b1}\nv_mov_b32 v{d+3}, 0")
        def dmas():
            if i + 3 < 8: dma_p1(i+3)
            elif i + 3 < 16: dma_p2(i+3)
            if i == 13: dma_w3(0, 18); dma_w3(1, 8); dma_w3(2, 9)
            if i == P["kvchk"] + 1:
                for e in (0, 2): T["kvin"] = kv_pair(e)
            if i == P["kvchk"] + 2:
                T["kvin"] = kv_pair(4); dma_w3(3, 10)
            if i == 16: dma_w3(4, 11); dma_w3(5, 0); dma_w3(6, 1)
        R = a.cap(lambda: reads(i)); F = a.cap(fill); D = a.cap(dmas)
        if P["strip"] & 1: R = []
        if P["strip"] & 4: D = [x for x in D if not (isinstance(x, Ins) and x.kind == "vmem" and x not in tagD.values() and x not in tagW3.values() and x is not T.get("kvin"))]
        if i == 0: a.mix([(R, 0, 1), (D, 0, 1), (F, 0, 1)], gaps=1)
        elif i <= 8:
            a.mix([(p1_mfmas(i-1, isv), 0, 1), (R, 0, 1), (D, 0, 1), (F, 0.25 if i == 8 else 0, 1)], gaps=4)
            st = stats(i-1)
            if i == 8:
                KP = WB + 32
                for x in st[:6]: a(x)
                for e in range(8): a(f"v_cvt_pk_bf16_f32 v{KP+e}, v{ACC0+2*e}, v{ACC0+2*e+1}")
                a(f"buffer_store_dwordx4 {vr(KP,4)}, v{vL16}, {srd(SWS)}, s{sKVo0} offen sc1")
                T["kv"] = a.vm(f"buffer_store_dwordx4 {vr(KP+4,4)}, v{vL16}, {srd(SWS)}, s{sKVo1} offen sc1")
                st = st[6:]
            for x in st: a(x)
        else:
            a.mix([(p2_mfmas(i-1), 0, 1), (R, 0, 0.75), (D, 0, 0.75), (F, 0.25 if i == 15 else 0.125, 0.875)], gaps=8)
        if i == 8:
            a(f"v_add_f32 v{vS}, v{vS}, v{vS+1}\nv_add_f32 v{vS+1}, v{vS+2}, v{vS+3}\nv_add_f32 v{vS+2}, v{vS+4}, v{vS+5}")
            a(f"v_and_b32 v{vT}, 0x1f0, v{vL16}\ns_lshl_b32 s3, s{sW}, 9\ns_add_u32 s3, s3, {STL}\nv_add_u32 v{vT+1}, s3, v{vT}")
            for e in range(3): a(f"v_mov_b32 v{vS+3+e}, v{vS+e}")
            a(f"s_xor_b32 s3, s{sW}, 4\ns_lshl_b32 s3, s3, 9\ns_add_u32 s3, s3, {STL}\nv_add_u32 v{vT}, s3, v{vT}")
            for e in range(3): a(f"v_permlane32_swap_b32 v{vS+e}, v{vS+3+e}")
            for e in range(3): a(f"v_add_f32 v{vS+e}, v{vS+e}, v{vS+3+e}")
            a(f"ds_write_b128 v{vT+1}, {vr(vS,4)}")
        if i < 16: a("s_waitcnt lgkmcnt(0)")
    stage(0, False)
    a(f"s_cmp_ge_u32 s{sC}, 8\ns_cbranch_scc1 L_p1v")
    k = a.save(); st0 = (nts[0], len(TSN))
    for i in range(1, 9): stage(i, False)
    a("s_branch L_p1j")
    k2 = a.save(); a.restore(k); a.label("L_p1v")
    nts[0] = st0[0]; del TSN[st0[1]:]
    for i in range(1, 9): stage(i, True)
    a.label("L_p1j"); a.merge(k2)
    for i in range(9, 17): stage(i, False)
    a(f"v_mfma_f32_32x32x16_bf16 {vr(ACC2,16)}, {vr(AU+4,4)}, {vr(BA,4)}, {vr(ACC2,16)}")
    a(f"v_mfma_f32_32x32x16_bf16 {vr(ACC1,16)}, {vr(AU,4)}, {vr(BA,4)}, {vr(ACC1,16)}")
    ts("pass2 done")
    w3q = [(7,2),(8,3),(9,4),(10,5),(11,6),(12,7)]
    def w3next():
        if w3q: dma_w3(*w3q.pop(0))
    w3next(); w3next()
    a(f"s_lshl_b32 s{sT2}, s{sS}, 11\ns_add_u32 s{sT2}, s{sHo}, s{sT2}\ns_lshl_b32 s3, s{sS}, 10\ns_sub_u32 s{sT3}, s{sHo}, s3")
    G0 = 168; HP = 192
    src = [ACC2+2*e for e in range(8)] + [ACC1+8+2*e for e in range(4)]
    for gidx in range(3):
        ss = src[4*gidx:4*gidx+4]; tt = [G0+8*gidx+2*e for e in range(4)]
        for s_, t_ in zip(ss, tt): a(f"v_pk_mul_f32 {vr(t_,2)}, {vr(s_,2)}, {vr(s_,2)}")
        for s_, t_ in zip(ss, tt): a(f"v_pk_fma_f32 {vr(t_,2)}, {vr(t_,2)}, {vr(vA01,2)}, {vr(vA01,2)} op_sel:[0,1,0] op_sel_hi:[1,1,0]")
        for s_, t_ in zip(ss, tt): a(f"v_pk_mul_f32 {vr(t_,2)}, {vr(t_,2)}, {vr(s_,2)}")
        w3next()
        for t_ in tt: a(f"v_exp_f32 v{t_}, v{t_}\nv_exp_f32 v{t_+1}, v{t_+1}")
        w3next()
        for t_ in tt: a(f"v_pk_fma_f32 {vr(t_,2)}, {vr(t_,2)}, {vr(vIG,2)}, {vr(vIG,2)} op_sel_hi:[1,0,0]")
        for t_ in tt: a(f"v_rcp_f32 v{t_}, v{t_}\nv_rcp_f32 v{t_+1}, v{t_+1}")
        for s_, t_ in zip(ss, tt): a(f"v_pk_mul_f32 {vr(t_,2)}, {vr(t_,2)}, {vr(s_,2)}")
        for e, t_ in enumerate(tt): a(f"v_cvt_pk_bf16_f32 v{HP+4*gidx+e}, v{t_}, v{t_+1}")
        if gidx < 2: a(f"buffer_store_dwordx4 {vr(HP+4*gidx,4)}, v{vL16}, {srd(SWS)}, s{sT2} offen offset:{1024*(2+gidx)} sc1")
        else: T["h"] = a.vm(f"buffer_store_dwordx4 {vr(HP+8,4)}, v{vL16}, {srd(SWS)}, s{sT3} offen offset:1024 sc1")
    QS = 0.25*LOG2E
    a(f"s_mov_b32 s{sT2}, {hx(QS)}\ns_mov_b32 s{sT3}, {hx(QS)}")
    for e in range(4): a(f"v_pk_mul_f32 {vr(ACC1+2*e,2)}, {vr(ACC1+2*e,2)}, s[{sT2}:{sT3}]")
    for e in range(4): a(f"v_cvt_pk_bf16_f32 v{vQ+e}, v{ACC1+2*e}, v{ACC1+2*e+1}")
    ts("gelu done")
    a.wait(vm=[tagW3[P["w3go"]], T["kvin"], T["b2"]])
    a("s_barrier")
    ts("attn go")
    if P["prio"]: a("s_setprio 3")
    def zup():
        lp, dn = a.newlabel("L_zp"), a.newlabel("L_zd")
        a(f"v_lshrrev_b32 v{HF}, 4, v0\nv_and_b32 v{HF+1}, 15, v0\nv_lshl_add_u32 v{HF}, v{HF}, 5, v{HF+1}\nv_lshlrev_b32 v{HF}, 7, v{HF}\nv_add_u32 v{HF}, {FL_KV}, v{HF}")
        a.label(lp)
        a(f"s_mov_b32 s3, 0")
        for e in range(4):
            a(f"buffer_load_dwordx2 {vr(HF+2+2*e,2)}, v{HF}, {srd(SWS)}, s3 offen sc1\ns_add_u32 s3, s3, {128*128}")
        a("s_waitcnt vmcnt(0)")
        a(f"v_cmp_ne_u64 vcc, s[{sN}:{sN+1}], {vr(HF+2,2)}")
        for e in range(1, 4): a(f"v_cmp_ne_u64 s[{sT2}:{sT3}], s[{sN}:{sN+1}], {vr(HF+2+2*e,2)}\ns_or_b64 vcc, vcc, s[{sT2}:{sT3}]")
        a(f"s_cbranch_scc0 {dn}")
        a(f"s_sleep 4\ns_sub_u32 s{sSpin}, s{sSpin}, 1\ns_cbranch_scc0 {lp}\ns_mov_b32 s{sSpin}, 0")
        a.label(dn)
        a(f"v_mov_b32 v{HF}, s{sN}")
        lane0(f"buffer_store_dword v{HF}, off, {srd(SWS)}, 0 sc1")
    a(f"s_lshl_b32 s3, s2, 3\ns_add_u32 s3, s3, s{sW}\ns_cmp_eq_u32 s3, {57*8}"); rare("s_cbranch_scc1", zup, 0, 1)
    def kread(i, buf=None): return a.ds(f"ds_read_b128 {vr(KF+4*(i%3) if buf is None else buf,4)}, v{vAK} offset:{i*1024}")
    def zfill(val2):
        for e in range(8): a(f"v_mov_b64 {vr(ZB+2*e,2)}, {val2}")
    def zswitch(i, val2):
        a(f"s_cmp_eq_u32 s{sI0}, {i}"); rare("s_cbranch_scc1", lambda: zfill(val2), 7, 1)
    def zinit(val2):
        zfill(val2)
        def ninf():
            a(f"v_mov_b32 v{vT}, 0xff800000\nv_mov_b32 v{vT+1}, 0xff800000"); zfill(vr(vT,2))
        a(f"s_cmp_gt_u32 s{sI0}, 0"); rare("s_cbranch_scc1", ninf, 0, 1)
    def sbuf(i): return S0 if i == 0 else (SA if i % 2 else SB)
    def smfma(i, val2):
        if i > 0: zswitch(i, val2)
        a(f"v_mfma_f32_32x32x16_bf16 {vr(sbuf(i),16)}, {vr(KF+4*(i%3),4)}, {vr(vQ,4)}, {vr(ZB,16)}")
    def merge_s():
        for e in range(16): a(f"v_cndmask_b32 v{SB+e}, v{S0+e}, v{SB+e}, s[{16+2*e}:{17+2*e}]")
    def vread(i, buf):
        a(f"s_mov_b64 exec, s[{sEX}:{sEX+1}]")
        a.ds(f"ds_read_b128 {vr(VF+8*buf,4)}, v{vAV} offset:{i*2048}")
        t_ = a.ds(f"ds_read_b128 {vr(VF+8*buf+4,4)}, v{vAV} offset:{i*2048+1024}")
        a("s_mov_b64 exec, -1")
        return t_
    def passA():
        tk = {i: kread(i) for i in range(3)}
        zinit("0")
        a.wait(lg=tk[0]); smfma(0, "0"); tk[3] = kread(3)
        a.wait(lg=tk[1]); smfma(1, "0"); tk[4] = kread(4)
        for i in range(1, 9):
            if i < 8:
                a.wait(lg=tk[i+1]); smfma(i+1, "0")
                if i + 4 < 9: tk[i+4] = kread(i+4)
            else: merge_s()
            b = sbuf(i)
            for e in range(8):
                if i == 1 and e < 2: a(f"v_max_f32 v{vM+e}, v{b+2*e}, v{b+2*e+1}")
                else: a(f"v_max3_f32 v{vM+e%2}, v{b+2*e}, v{b+2*e+1}, v{vM+e%2}")
        a(f"v_max_f32 v{vM}, v{vM}, v{vM+1}")
        a(f"v_mov_b32 v{vT}, v{vM}\nv_permlane32_swap_b32 v{vM}, v{vT}\nv_max_f32 v{vM}, v{vM}, v{vT}\nv_sub_f32 v{vM}, 0, v{vM}\nv_mov_b32 v{vM+1}, v{vM}")
    def passB(tk, hook):
        m2 = vr(vM, 2)
        zinit(m2)
        a.wait(lg=tk[0]); smfma(0, m2); tk[3] = kread(3)
        a.wait(lg=tk[1]); smfma(1, m2); tk[4] = kread(4)
        tv = {1: vread(1, 1)}
        for i in range(1, 9):
            if i < 8:
                a.wait(lg=tk[i+1]); smfma(i+1, m2)
                if i + 4 < 9: tk[i+4] = kread(i+4)
                tv[i+1] = vread(i+1, (i+1) % 2)
            else:
                tv[0] = vread(0, 1)
                merge_s()
            b = sbuf(i)
            for e in range(16):
                a(f"v_exp_f32 v{b+e}, v{b+e}")
                hook(i, e)
            for e in range(8): a(f"v_cvt_pk_bf16_f32 v{PP+e}, v{b+2*e}, v{b+2*e+1}")
            if i == 8:
                for e in range(8): a(f"v_bfi_b32 v{PF+e}, v{PM+e}, 0, v{PP+e}\nv_and_b32 v{PP+e}, v{PM+e}, v{PP+e}")
            a.wait(lg=tv[i])
            vb = VF + 8*(i % 2)
            a(f"v_mfma_f32_32x32x16_bf16 {vr(OA,16)}, {vr(vb,4)}, {vr(PP,4)}, {'0' if i == 1 else vr(OA,16)}")
            a(f"v_mfma_f32_32x32x16_bf16 {vr(OA,16)}, {vr(vb+4,4)}, {vr(PP+4,4)}, {vr(OA,16)}")
            if i == 8:
                a.wait(lg=tv[0])
                a(f"v_mfma_f32_32x32x16_bf16 {vr(OA,16)}, {vr(VF+8,4)}, {vr(PF,4)}, {vr(OA,16)}")
                a(f"v_mfma_f32_32x32x16_bf16 {vr(OA,16)}, {vr(VF+12,4)}, {vr(PF+4,4)}, {vr(OA,16)}")
    t8 = kread(8, PP)
    tk = {i: kread(i) for i in range(3)}
    a(f"v_mov_b64 {vr(vM,2)}, 0")
    a.wait(lg=t8)
    for e in range(4): a(f"v_dot2c_f32_bf16 v{vM+e%2}, v{PP+e}, v{vQ+e}")
    a(f"v_add_f32 v{vM}, v{vM}, v{vM+1}")
    a(f"v_mov_b32 v{vM+1}, v{vM}\nv_permlane32_swap_b32 v{vM}, v{vM+1}\nv_add_f32 v{vM}, v{vM}, v{vM+1}\nv_sub_f32 v{vM}, 0, v{vM}\nv_mov_b32 v{vM+1}, v{vM}")
    tagA = []
    def aload():
        b = len(tagA)
        if b >= 30: return
        if b == 22: a(f"s_add_u32 s{sAct}, s{sAct}, {(96-88)*1024}")
        tagA.append(a.vm(f"buffer_load_dwordx4 {vr(HF+4*(b%22),4)}, v{vL16}, {srd(SWS)}, s{sAct} offen sc1"))
        a(f"s_add_u32 s{sAct}, s{sAct}, 4096")
    def hook(i, e):
        if P["prio"] and e == 0 and i in (3, 5, 7): a(f"s_setprio {3 - (i-1)//2}")
        if i == P["hpub"] and e == 15:
            a.wait(vm=T["h"]); flag_store(sHL, vT); ts("h published")
        if i == P["hpoll"] and e == 8: T["hp"] = poll_issue(vFl, vPo)
        if i == P["hchk"] and e == 0:
            poll_check(T["hp"], vFl, vPo); ts("h flags ok")
        if i >= P["hchk"] and e % 4 == 1: aload()
    passB(tk, hook)
    assert not w3q
    A3 = 32; W3F = 64; NB = 5; INIT = 136
    a(f"v_lshrrev_b32 v{vT}, 5, v0\nv_bfe_u32 v{vT+1}, v0, 2, 2\nv_lshl_add_u32 v{vT}, v{vT}, 2, v{vT+1}\nv_lshlrev_b32 v{vT}, 7, v{vT}")
    a(f"v_lshrrev_b32 v{vT+1}, 1, v{vT+1}\nv_lshl_add_u32 v{vT}, v{vT+1}, 6, v{vT}\nv_bfe_u32 v{vT+1}, v0, 4, 1\nv_lshl_add_u32 v{vT}, v{vT+1}, 5, v{vT}")
    a(f"v_and_b32 v{vT+1}, 3, v0\nv_lshl_add_u32 v{vT}, v{vT+1}, 3, v{vT}\ns_lshl_b32 s3, s{sKq}, 11\nv_add_u32 v{vA3}, s3, v{vT}\nv_xor_b32 v{vA3+1}, 64, v{vA3}")
    a(f"s_mov_b32 s3, {hx(2.0**30) if not P['forcefb'] else hx(1.5)}\nv_cmp_nle_f32 vcc, v{OA+8}, s3")
    def fallback():
        passA()
        tk = {i: kread(i) for i in range(3)}
        passB(tk, lambda i, e: None)
        a("s_nop 12")
    rare("s_cbranch_vccnz", fallback, 0, 1)
    a(f"v_rcp_f32 v{vT}, v{OA+8}\nv_mul_f32 v{vT}, v{vT}, v{vIG+1}")
    for e in range(4): a(f"v_pk_mul_f32 {vr(OA+2*e,2)}, {vr(OA+2*e,2)}, {vr(vT,2)} op_sel_hi:[1,0]")
    for e in range(4): a(f"v_cvt_pk_bf16_f32 v{PP+e}, v{OA+2*e}, v{OA+2*e+1}")
    T["o"] = a.vm(f"buffer_store_dwordx4 {vr(PP,4)}, v{vL16}, {srd(SWS)}, s{sOo} offen sc1")
    ts("attn done")
    if P["hchk"] > 8:
        poll_check(T["hp"], vFl, vPo)
        ts("h flags ok")
    while len(tagA) < P["hahead"]: aload()
    a(f"v_lshrrev_b32 v{vT+2}, 2, v{vL16}\nv_and_b32 v{vT+2}, 0x7c, v{vT+2}\ns_lshl_b32 s3, s{sTT3}, 7\ns_add_u32 s3, s3, {OMGL}\nv_add_u32 v{vT+2}, s3, v{vT+2}")
    tom = a.ds(f"ds_read_b32 v{vT+2}, v{vT+2}")
    win = {vA3: 0, vA3+1: 0}
    def prewin(reg, lo, hi):
        cur = win[reg]
        if not (0 <= lo - cur and hi - cur <= 65535-16):
            new = min((lo // 8192) * 8192, 98304); d = new - cur
            a(f"v_add_u32 v{reg}, {d}, v{reg}" if d >= 0 else f"v_subrev_u32 v{reg}, {-d}, v{reg}"); win[reg] = new
    def w3reads(b, buf):
        base = w3slot[b]*BLK
        for r in (vA3, vA3+1): prewin(r, base, base+1024)
        for ct in range(2):
            a.ds(f"ds_read_b64_tr_b16 {vr(buf+4*ct,2)}, v{vA3+ct} offset:{base-win[vA3+ct]}")
            t_ = a.ds(f"ds_read_b64_tr_b16 {vr(buf+4*ct+2,2)}, v{vA3+ct} offset:{base+1024-win[vA3+ct]}")
        return t_
    for e, b2 in enumerate((vB2a, vB2b)):
        d = INIT + 4*e
        a(f"v_lshl_or_b32 v{d}, v{b2}, 16, v{b2}\nv_mov_b32 v{d+1}, 0\nv_mov_b64 {vr(d+2,2)}, 0")
    a(f"v_mov_b32 v{INIT+9}, 0\nv_mov_b64 {vr(INIT+10,2)}, 0")
    a.wait(lg=tom)
    hilo(INIT+8, vT+2, vT)
    a(f"v_mfma_f32_32x32x16_bf16 {vr(A3,16)}, {vr(INIT,4)}, {vr(INIT+8,4)}, 0")
    a(f"v_mfma_f32_32x32x16_bf16 {vr(A3+16,16)}, {vr(INIT+4,4)}, {vr(INIT+8,4)}, 0")
    tr = {}
    AHEAD = 3
    sync = {5: (12, [(13,12),(14,13),(15,14),(16,15),(17,16),(18,17),(19,18),(20,8),(21,9)]),
            9: (None, [(22,0),(23,1),(24,2),(25,3)]),
            13: (18, [(26,4),(27,5),(28,6),(29,7)]),
            19: (23, []), 24: (29, [])}
    pend = []
    def issue_read(b):
        if b in sync:
            landed, ref = sync[b]
            a("s_waitcnt lgkmcnt(0)")
            if landed is not None: a.wait(vm=tagW3[landed])
            a("s_barrier")
            ts(f"X{b}")
            pend.extend(ref)
        tr[b] = w3reads(b, W3F + 8*(b % NB))
    for b in range(AHEAD): issue_read(b)
    vD = 104
    for b in range(30):
        if b + AHEAD < 30: issue_read(b + AHEAD)
        if b == P["opub"]:
            a.wait(vm=T["o"])
            a(f"s_add_u32 s{sHL}, s{sHL}, {FL_O-FL_H}")
            flag_store(sHL, vT)
            ts("o published")
        if b == P["opoll"]:
            a(f"v_add_u32 v{vFl}, {FL_O-FL_H}, v{vFl}")
            T["op"] = poll_issue(vFl, vPo)
        if b == P["ochk"]:
            poll_check(T["op"], vFl, vPo); ts("o flags ok")
        for _ in range(2):
            if (len(tagA) < 22 or b >= P["ochk"]) and len(tagA) < b + P["hahead"] + 1: aload()
        for _ in range(2):
            if pend: dma_w3(*pend.pop(0))
        if b == 20:
            a(f"v_and_b32 v{vT}, 31, v0\nv_lshlrev_b32 v{vT+1}, 8, v{vT}\ns_lshl_b32 s3, s{sW}, 13\ns_add_u32 s3, s3, {RB}\nv_add_u32 v{vT+1}, s3, v{vT+1}")
            a(f"v_and_b32 v{vT}, 7, v0\nv_lshrrev_b32 v{vT+3}, 5, v0\nv_xor_b32 v{vT}, v{vT}, v{vT+3}\nv_lshl_add_u32 v{vD}, v{vT}, 4, v{vT+1}")
            for j in range(1, 4): a(f"v_xor_b32 v{vD+j}, {32*j}, v{vD}")
        if b == 22:
            a(f"v_lshrrev_b32 v{vT}, 3, v0\nv_and_b32 v{vT+1}, 7, v0\nv_lshlrev_b32 v{vT+1}, 1, v{vT+1}\nv_xor_b32 v{vT+1}, v{vT+1}, v{vT}")
            a(f"s_lshl_b32 s3, s{sT}, 11\ns_lshl_b32 s{sT2}, s{sS}, 13\ns_add_u32 s3, s3, s{sT2}\ns_add_u32 s3, s3, {RB}")
            a(f"v_lshlrev_b32 v{vT+2}, 8, v{vT}\nv_lshl_add_u32 v{vT+2}, v{vT+1}, 4, v{vT+2}\nv_add_u32 v{vT+2}, s3, v{vT+2}\nv_xor_b32 v{vT+3}, 16, v{vT+2}")
        if b == 23:
            a(f"s_lshl_b32 s3, s{sR}, 7\ns_lshr_b32 s{sT2}, s{sC}, 3\ns_lshl_b32 s{sT2}, s{sT2}, 6\ns_add_u32 s3, s3, s{sT2}\ns_lshl_b32 s{sT2}, s{sW}, 3\ns_add_u32 s3, s3, s{sT2}\ns_lshl_b32 s3, s3, 10")
            a(f"s_and_b32 s{sT2}, s{sC}, 7\ns_lshl_b32 s{sT2}, s{sT2}, 7\ns_add_u32 s{sOo}, s3, s{sT2}")
            a(f"v_lshlrev_b32 v{vT}, 10, v{vT}\nv_and_b32 v{vT+1}, 0x70, v{vL16}\nv_add_u32 v{vT}, v{vT}, v{vT+1}")
        a.wait(vm=tagA[b], lg=tr[b])
        def mm():
            for ct in range(2):
                a(f"v_mfma_f32_32x32x16_bf16 {vr(A3+16*ct,16)}, {vr(W3F+8*(b%NB)+4*ct,4)}, {vr(HF+4*(b%22),4)}, {vr(A3+16*ct,16)}")
        if b == 21:
            lk = a.newlabel("L_sk"); a(f"s_cmp_ge_u32 s{sKq}, 2\ns_cbranch_scc1 {lk}"); k = a.save()
            mm(); a.label(lk); a.merge(k)
            ts("h gemm done")
        else: mm()
    ts("o gemm done")
    for ct in range(2):
        for j in range(4): a(f"ds_write_b128 v{vD+j}, {vr(A3+16*ct+4*j,4)} offset:{128*ct}")
    a("s_waitcnt lgkmcnt(0)\ns_barrier")
    R0 = 64
    for kq in range(4):
        a(f"ds_read_b128 {vr(R0+8*kq,4)}, v{vT+2} offset:{kq*16384}\nds_read_b128 {vr(R0+8*kq+4,4)}, v{vT+3} offset:{kq*16384}")
    a("s_waitcnt lgkmcnt(4)")
    for e in range(4): a(f"v_pk_add_f32 {vr(R0+2*e,2)}, {vr(R0+2*e,2)}, {vr(R0+8+2*e,2)}")
    a("s_waitcnt lgkmcnt(0)")
    for e in range(4): a(f"v_pk_add_f32 {vr(R0+16+2*e,2)}, {vr(R0+16+2*e,2)}, {vr(R0+24+2*e,2)}")
    for e in range(4): a(f"v_pk_add_f32 {vr(R0+2*e,2)}, {vr(R0+2*e,2)}, {vr(R0+16+2*e,2)}")
    for e in range(4): a(f"v_cvt_pk_bf16_f32 v{R0+8+e}, v{R0+2*e}, v{R0+2*e+1}")
    a(f"buffer_store_dwordx4 {vr(R0+8,4)}, v{vT}, {srd(SOUT)}, s{sOo} offen" + (" sc1" if P["outsc1"] else ""))
    if debug:
        a("s_waitcnt vmcnt(0)")
        ts("end")
        a(f"s_memrealtime s[{sTS}:{sTS+1}]\ns_waitcnt lgkmcnt(0)\nv_writelane_b32 v{vTS}, s{sTS}, 62")
        a(f"v_writelane_b32 v{vTS}, s{sSpin}, 63")
        a(f"s_lshl_b32 s3, s2, 3\ns_add_u32 s3, s3, s{sW}\ns_lshl_b32 s3, s3, 8\ns_add_u32 s3, s3, {TSB}\nv_lshlrev_b32 v{vT}, 2, v0")
        a(f"buffer_store_dword v{vTS}, v{vT}, {srd(SWS)}, s3 offen")
    a.label("L_end")
    a("s_endpgm")
    a.raw("L_hot_end:")
    i = 0
    while i < len(tail):
        tail[i](); i += 1
    a.raw(f".set CODE_LAST, L_hot_end - {NAME} - 64")
    a.raw(f""".section .rodata,"a"
.p2align 6
.amdhsa_kernel {NAME}
  .amdhsa_next_free_vgpr 256
  .amdhsa_next_free_sgpr 102
  .amdhsa_accum_offset 256
  .amdhsa_group_segment_fixed_size 0
  .amdhsa_kernarg_size 96
  .amdhsa_user_sgpr_count 2
  .amdhsa_user_sgpr_kernarg_segment_ptr 1
  .amdhsa_system_sgpr_workgroup_id_x 1
.end_amdhsa_kernel""")
    return a.finish()

if __name__ == "__main__":
    import json
    P = json.loads(sys.argv[1]) if len(sys.argv) > 1 else {}
    out = sys.argv[2] if len(sys.argv) > 2 else "gated_mix__sliding_block__mixer_channel_mlp__prompt.s"
    txt, pads = gen(False, P)
    open(out, "w").write(txt)
    txt, pads2 = gen(True, P)
    open(sys.argv[3] if len(sys.argv) > 3 else "dbg.s", "w").write(txt)
    open("dbg_ts.txt", "w").write("\n".join(TSN))
    print("pads", pads, pads2, "nts", len(TSN))
```

```python
import sys, struct
from asmlib import *
NAME = "gated_mix__sliding_block__mixer_channel_mlp__prompt_kernel"
HDR = open("gated_mix__sliding_block__mixer_channel_mlp__prompt.s.ref").read().split("; Override launch")[0]

FL_KV = 0x10000; FL_H = 0x20000; FL_O = 0x30000
KBUF = 0x40000
VBUF = KBUF + 0x200000
ACT = VBUF + 0x200000
TSB = ACT + 0x800000
WS_SIZE = TSB + 0x80000
LDS_BYTES = 163840
BLK = 8192
MISC = 19 * BLK
GWL = MISC
STL = MISC + 1024
CSL = MISC + 1024
OMGL = MISC + 5120
KL = 12 * BLK; VL = KL + 24576
RB = 10 * BLK
LOG2E = 1.4426950408889634
def f2u(f): return struct.unpack("<I", struct.pack("<f", f))[0]
def hx(f): return "0x%08x" % f2u(f)
TSN = []
DEF = dict(pf=1, fine=False, hpub=2, hpoll=5, hchk=7, prio=1, w3go=6, outsc1=False, kvpub=10, kvpoll=12, kvchk=13, hahead=8, opub=3, opoll=12, ochk=15, forcefb=False, strip=0, pfpos=dict(x=-1,q=-1,w1=1,w2=1,wo=1))

def gen(debug=False, P=None):
    P = dict(DEF, **(P or {}))
    a = Asm()
    tail = []
    sW, sT, sS, sR, sC = 4, 5, 6, 7, 8
    sW1k, sW2k, sOX, sOKV, sOPa, sOPb, sPinc = 9, 10, 11, 12, 13, 14, 15
    sHM = 11
    SX, SQ, SW1, SPB, SW2, SWO, SWS, SOUT, SDBG, SB2 = 40, 44, 48, 52, 56, 60, 64, 68, 72, 76
    SGW, SB1 = 16, 20
    sKVo0, sKVo1, sHo, sOo, sAct, sOW3, sI0, sSpin, sT2, sT3, sONE, sKq = 80, 81, 82, 83, 84, 85, 86, 87, 88, 89, 90, 91
    sTS = 92; sEX = 94
    sX, sFl, sTT3, sHL = 96, 97, 98, 99
    sN = 100
    sKi0, sKi1, sKi2, sKt = 13, 14, 15, 12
    def srd(b): return f"s[{b}:{b+3}]"
    def vr(b, n): return f"v[{b}:{b+n-1}]"
    vL16, vW3, vPa, vPb, vB1a, vB1b, vTS = 1, 2, 3, 4, 5, 6, 7
    vCS = 8; vA01, vIG, vMS = 10, 12, 14; vS = 10
    vA = 16; vT = 28; WB = 32
    ACC1 = 96; ACC2 = 112; ACC0 = 112; XR = 128
    vXa, vXb, vKV, vZ, vAX, vAW, vAG = 96, 97, 98, 99, 100, 104, 108
    fL8, fS8, fL4, fSW, fRow, fH, fCH, fR4, fC8, fTok, fHR, f0, f1, f2, f3 = range(240, 255)
    nts = [0]
    del TSN[:]
    def ts(name="", fine=False):
        if not debug or (fine and not P["fine"]): return
        a(f"s_memtime s[{sTS}:{sTS+1}]\ns_waitcnt lgkmcnt(0)")
        a(f"v_writelane_b32 v{vTS}, s{sTS}, {nts[0]}")
        TSN.append(name); nts[0] += 1
    def srdw(b, n): a(f"s_mov_b32 s{b+2}, {n}\ns_mov_b32 s{b+3}, 0x00020000")
    def rare(cond_branch, body, padin=7, padout=1):
        lo, lb = a.newlabel("L_rare"), a.newlabel("L_back")
        a(f"{cond_branch} {lo}")
        a.label(lb)
        def emit():
            a.label(lo)
            a(f"s_nop {padin}")
            body()
            a(f"s_nop {padout}\ns_branch {lb}")
        tail.append(emit)
    def lane0(txt, count=True):
        a.atomic(True); a("s_mov_b64 exec, 1"); t_ = a(txt, count=count); a("s_mov_b64 exec, -1"); a.atomic(False)
        return t_

    a.raw(HDR.rstrip())
    a.raw(f"; @launch grid=(256,1,1) block=(512,1,1) lds={LDS_BYTES}")
    a.raw('.amdgcn_target "amdgcn-amd-amdhsa--gfx950"\n.text')
    a.raw(f".globl {NAME}\n.p2align 8\n.type {NAME},@function\n{NAME}:")
    a("s_cmp_ge_u32 s2, 0x100\ns_cbranch_scc1 L_end")
    a(f"s_load_dwordx2 s[{SX}:{SX+1}], s[0:1], 0\ns_load_dwordx2 s[{SQ}:{SQ+1}], s[0:1], 8\ns_load_dwordx2 s[{SGW}:{SGW+1}], s[0:1], 64")
    a(f"s_getpc_b64 s[{sEX}:{sEX+1}]")
    a("s_bfe_u32 s8, s2, 0x30003\nv_and_b32 v28, 31, v0\nv_lshlrev_b32 v28, 3, v28\nv_add_lshl_u32 v28, v28, s8, 7\nv_min_u32 v28, CODE_LAST, v28")
    a("v_cmp_gt_u32 vcc, 32, v0\ns_cbranch_vccz L_nocpf")
    a(f"global_load_dword v29, v28, s[{sEX}:{sEX+1}]", count=False)
    a.label("L_nocpf")
    a("v_lshrrev_b32 v30, 6, v0\nv_and_b32 v0, 63, v0")
    a(f"v_readfirstlane_b32 s{sW}, v30")
    a(f"s_and_b32 s3, s2, 6\ns_lshl_b32 s3, s3, 1\ns_lshr_b32 s{sR}, s2, 6\ns_add_u32 s{sR}, s{sR}, s3")
    a(f"s_and_b32 s3, s2, 1\ns_lshl_b32 s3, s3, 3\ns_add_u32 s{sC}, s{sC}, s3")
    a(f"v_lshrrev_b32 v{fL8}, 3, v0\nv_and_b32 v{fS8}, 7, v0\nv_lshrrev_b32 v{fL4}, 4, v0")
    a(f"s_lshl_b32 s{sW1k}, s{sW}, 10\ns_lshl_b32 s{sW2k}, s{sW}, 11")
    a(f"s_lshl_b32 s3, s{sR}, 3\ns_add_u32 s3, s3, s{sW}\ns_lshl_b32 s{sOX}, s3, 14")
    a(f"v_xor_b32 v{f0}, v{fS8}, v{fL4}\nv_lshlrev_b32 v{f0}, 4, v{f0}\nv_lshl_add_u32 v{vXa}, v{fL8}, 10, v{f0}")
    a(f"v_xor_b32 v{vXb}, 64, v{vXa}\nv_add_u32 v{vXb}, {8192-1024}, v{vXb}")
    a(f"v_and_b32 v{fCH}, 1, v{fL4}\nv_lshlrev_b32 v{fSW}, 2, v{fCH}\nv_xor_b32 v{fSW}, v{fSW}, v{fS8}\nv_lshlrev_b32 v{fSW}, 4, v{fSW}")
    a(f"s_mul_i32 s{sOKV}, s{sW}, {8*3072}\ns_lshl_b32 s3, s{sC}, 7\ns_add_u32 s{sOKV}, s{sOKV}, s3")
    a(f"v_mul_u32_u24 v{vKV}, 3072, v{fL8}\nv_add_u32 v{vKV}, v{vKV}, v{fSW}")
    srdw(SX, 2048*1024); srdw(SQ, 512*3072); srdw(SGW, 1024)
    a(f"s_and_b32 s{sT}, s{sW}, 3\nv_lshlrev_b32 v{f1}, 2, v0")
    a("s_waitcnt lgkmcnt(0)")
    if debug:
        a(f"v_mov_b32 v{vTS}, 0")
        a(f"s_memrealtime s[{sTS}:{sTS+1}]\ns_waitcnt lgkmcnt(0)\nv_writelane_b32 v{vTS}, s{sTS}, 61")
        ts("start")
    tagD = {}; T = {}
    def dma_p1(q):
        a(f"s_add_u32 m0, s{sW2k}, {(q%4)*2*BLK}")
        a(f"buffer_load_dwordx4 v{vXa}, {srd(SX)}, s{sOX} offen lds")
        a(f"buffer_load_dwordx4 v{vXb}, {srd(SX)}, s{sOX} offen offset:1024 lds")
        a(f"s_add_u32 m0, s{sW1k}, {(8+q%4)*BLK-1024}")
        a(f"s_add_u32 s{sOX}, s{sOX}, 128")
        tagD[q] = a.vm(f"buffer_load_dwordx4 v{vKV}, {srd(SQ)}, s{sOKV} offen offset:1024 lds")
        a(f"s_add_u32 s{sOKV}, s{sOKV}, {64*3072}")
    def dma_p2(i):
        a(f"s_add_u32 m0, s{sW2k}, {(i%4)*2*BLK}")
        a(f"buffer_load_dwordx4 v{vPa}, {srd(SW1)}, s{sOPa} offen lds")
        a(f"s_add_u32 m0, s{sW2k}, {(i%4)*2*BLK+1024}")
        a(f"s_add_u32 s{sOPa}, s{sOPa}, {64*2752}")
        tagD[i] = a.vm(f"buffer_load_dwordx4 v{vPb}, {srd(SPB)}, s{sOPb} offen lds")
        a(f"s_add_u32 s{sOPb}, s{sOPb}, s{sPinc}")
    w3slot = {}; tagW3 = {}
    def dma_w3(b, slot):
        assert b == len(w3slot)
        w3slot[b] = slot
        if b == 22: a(f"s_mov_b32 s{sOW3}, 0")
        a(f"s_add_u32 m0, s{sW1k}, {slot*BLK}")
        tagW3[b] = a.vm(f"buffer_load_dwordx4 v{vW3}, {srd(SW2 if b < 22 else SWO)}, s{sOW3} offen lds")
        a(f"s_add_u32 s{sOW3}, s{sOW3}, {64*1024}")
    dma_p1(0)
    a(f"s_lshl_b32 s3, s{sT}, 8\ns_add_u32 m0, s3, {GWL}")
    tagGW = a.vm(f"buffer_load_dword v{f1}, {srd(SGW)}, s3 offen lds")
    a(f"s_load_dwordx2 s[{SW1}:{SW1+1}], s[0:1], 32\ns_load_dwordx2 s[{SW2}:{SW2+1}], s[0:1], 48\ns_load_dwordx2 s[{SWO}:{SWO+1}], s[0:1], 16\ns_load_dwordx2 s[{SWS}:{SWS+1}], s[0:1], 88")
    a(f"s_load_dwordx2 s[{SOUT}:{SOUT+1}], s[0:1], 72\ns_load_dwordx2 s[{SB1}:{SB1+1}], s[0:1], 40\ns_load_dwordx2 s[{SB2}:{SB2+1}], s[0:1], 56")
    def pf(which):
        if not P["pf"] or not which: return
        lend = a.newlabel("L_pfe")
        def x_():
            a(f"s_lshr_b32 s{sT2}, s2, 3\ns_and_b32 s3, s2, 7\ns_lshl_b32 s3, s3, 5\ns_add_u32 s3, s3, s{sT2}\ns_lshl_b32 s3, s3, 13\nv_lshlrev_b32 v{f0}, 7, v0")
            a(f"buffer_load_dword v31, v{f0}, {srd(SX)}, s3 offen", count=False)
        def up():
            a(f"s_lshr_b32 s{sT2}, s2, 3\ns_bfe_u32 s{sT3}, s2, 0x20001\ns_lshl_b32 s{sT3}, s{sT3}, 5\ns_add_u32 s{sT3}, s{sT3}, s{sT2}\ns_and_b32 s{sT2}, s2, 1")
            a(f"s_lshl_b32 s3, s{sT3}, 2\nv_add_u32 v{f0}, s3, v{fL4}")
        def q_():
            up()
            a(f"v_mul_u32_u24 v{f0}, 3072, v{f0}")
            a(f"s_lshl_b32 s3, s{sT2}, 10\ns_add_u32 s3, s3, 1024\nv_lshl_add_u32 v{f1}, v{fS8}, 7, s3")
            a(f"s_lshl_b32 s3, s{sT2}, 9\nv_and_b32 v{f2}, 3, v0\nv_lshl_add_u32 v{f2}, v{f2}, 7, s3\nv_and_b32 v{f3}, 8, v0\nv_cmp_eq_u32 vcc, 0, v{f3}\nv_cndmask_b32 v{f1}, v{f2}, v{f1}, vcc\nv_add_u32 v{f0}, v{f0}, v{f1}")
            a(f"buffer_load_dword v31, v{f0}, {srd(SQ)}, 0 offen", count=False)
        def w1_():
            up()
            a(f"v_mul_u32_u24 v{f0}, 2752, v{f0}")
            a(f"v_and_b32 v{f1}, 15, v0\nv_lshlrev_b32 v{f1}, 7, v{f1}\nv_min_u32 v{f1}, 1532, v{f1}\ns_mul_i32 s3, s{sT2}, 1536\nv_add_u32 v{f1}, s3, v{f1}\nv_min_u32 v{f1}, 2748, v{f1}\nv_add_u32 v{f0}, v{f0}, v{f1}")
            a(f"buffer_load_dword v31, v{f0}, {srd(SW1)}, 0 offen", count=False)
        def w2_():
            a(f"s_mul_i32 s3, s2, {43*128}\nv_min_u32 v{f0}, 42, v0\nv_lshlrev_b32 v{f0}, 7, v{f0}")
            a(f"buffer_load_dword v31, v{f0}, {srd(SW2)}, s3 offen", count=False)
        def wo_():
            a(f"s_lshl_b32 s3, s2, 11\nv_and_b32 v{f0}, 15, v0\nv_lshlrev_b32 v{f0}, 7, v{f0}")
            a(f"buffer_load_dword v31, v{f0}, {srd(SWO)}, s3 offen", count=False)
        F = dict(x=x_, q=q_, w1=w1_, w2=w2_, wo=wo_)
        a.atomic(True)
        for n, k in enumerate(which):
            ln = a.newlabel("L_pf")
            a(f"s_cmp_lg_u32 s{sW}, {n}\ns_cbranch_scc1 {ln}")
            F[k]()
            a(f"s_branch {lend}")
            a.label(ln)
        a.label(lend)
        a("s_nop 0")
        a.atomic(False)
    def pfat(pos): return [k for k in ("x","q","w1","w2","wo") if P["pfpos"][k] == pos]
    a("s_barrier")
    if pfat(-2): pf(pfat(-2)); a("s_barrier")
    dma_p1(1)
    ts("d1 issued")
    srdw(SW1, 512*2752); srdw(SW2, 1376*1024); srdw(SWO, 512*1024); srdw(SWS, WS_SIZE)
    a("s_waitcnt lgkmcnt(0)\ns_barrier")
    pf(pfat(-1))
    a(f"s_lshr_b32 s{sS}, s{sW}, 2\ns_lshl_b32 s{sX}, s{sS}, 1\ns_xor_b32 s{sX}, s{sX}, s{sT}")
    a(f"v_lshrrev_b32 v{fH}, 5, v0\nv_bfe_u32 v{fR4}, v0, 2, 2\nv_and_b32 v{fC8}, 3, v0\nv_lshlrev_b32 v{fC8}, 3, v{fC8}\nv_and_b32 v{fTok}, 31, v0\nv_lshl_add_u32 v{fHR}, v{fH}, 3, v{fR4}")
    a(f"s_lshl_b32 s3, s{sT}, 5\nv_add_lshl_u32 v{f0}, v{fTok}, s3, 7\nv_bfe_u32 v{f1}, v{fTok}, 1, 3\ns_lshl_b32 s3, s{sX}, 1\nv_xor_b32 v{f1}, v{f1}, v{fH}\nv_xor_b32 v{f1}, s3, v{f1}")
    a(f"v_lshl_add_u32 v{vAX}, v{f1}, 4, v{f0}")
    for j in range(1, 4): a(f"v_xor_b32 v{vAX+j}, {32*j}, v{vAX}")
    a(f"v_lshrrev_b32 v{f1}, 1, v{fR4}\nv_xor_b32 v{f1}, s{sS}, v{f1}\nv_lshl_add_u32 v{f2}, v{fCH}, 5, v{fC8}\nv_lshl_add_u32 v{f1}, v{f1}, 6, v{f2}")
    a(f"s_lshl_b32 s3, s{sX}, 11\ns_add_u32 s3, s3, {8*BLK}\nv_lshl_add_u32 v{f1}, v{fHR}, 7, v{f1}\nv_add_u32 v{vAW}, s3, v{f1}")
    for j in range(1, 4): a(f"v_xor_b32 v{vAW+j}, {j*2048}, v{vAW}")
    a(f"s_lshl_b32 s3, s{sX}, 5\ns_add_u32 s3, s3, {GWL}\nv_lshl_add_u32 v{vAG}, v{fH}, 4, s3\nv_xor_b32 v{vAG+1}, 32, v{vAG}")
    a(f"buffer_load_dword v{vZ}, off, {srd(SWS)}, 0 sc1")
    dma_p1(2)
    ts("d2 issued")

    def su_a():
        a(f"s_mov_b32 s{sONE}, 0x3f803f80\ns_lshr_b32 s{sKq}, s{sW}, 1\nv_lshlrev_b32 v{vL16}, 4, v0")
        for e in range(3): a(f"v_mov_b64 {vr(vS+2*e,2)}, 0")
        a(f"v_mov_b64 {vr(vCS,2)}, 0")
        srdw(SOUT, 2048*1024); srdw(SB1, 2752); srdw(SB2, 1024)
        a(f"s_bitcmp1_b32 s{sW}, 0")
        a(f"s_cselect_b64 s[{SPB}:{SPB+1}], s[{SQ}:{SQ+1}], s[{SW1}:{SW1+1}]")
        a(f"s_cselect_b32 s{SPB+2}, s{SQ+2}, s{SW1+2}\ns_mov_b32 s{SPB+3}, 0x00020000")
        a(f"s_mov_b32 s{sT2}, 3072\ns_mov_b32 s{sT3}, 2752\ns_cselect_b32 s{sPinc}, s{sT2}, s{sT3}")
        a(f"s_cselect_b32 s{sT2}, 64, 192\ns_mul_i32 s{sT2}, s{sT2}, s{sC}\ns_mul_i32 s{sOPb}, s{sPinc}, s{sKq}\ns_lshl_b32 s{sOPb}, s{sOPb}, 4\ns_add_u32 s{sOPb}, s{sOPb}, s{sT2}\ns_lshl_b32 s{sPinc}, s{sPinc}, 6")
        a(f"s_mul_i32 s{sOPa}, s{sKq}, {16*2752}\ns_mul_i32 s3, s{sC}, 192\ns_add_u32 s{sOPa}, s{sOPa}, s3")
    def su_b():
        def w1off(dst, i):
            a(f"v_mul_u32_u24 v{f1}, 171, v{i}\nv_lshrrev_b32 v{f1}, 11, v{f1}")
            a(f"v_mul_u32_u24 v{f2}, {2752-192}, v{f1}\nv_lshl_add_u32 v{dst}, v{i}, 4, v{f2}")
        a(f"s_and_b32 s3, s{sW}, 1\ns_lshl_b32 s3, s3, 7\nv_add_u32 v{f0}, s3, v0")
        w1off(vPa, f0)
        a(f"v_add_u32 v{f0}, 64, v0")
        w1off(vPb, f0)
        a(f"v_lshrrev_b32 v{f0}, 2, v0\nv_mul_u32_u24 v{f0}, 3072, v{f0}\nv_lshl_add_u32 v{f0}, v{fC8}, 1, v{f0}")
        a(f"s_bitcmp1_b32 s{sW}, 0\ns_cselect_b64 vcc, -1, 0\nv_cndmask_b32 v{vPb}, v{vPb}, v{f0}, vcc")
        a(f"s_and_b32 s3, s{sC}, 7\ns_lshl_b32 s3, s3, 7\ns_lshl_b32 s{sT2}, s{sW}, 13\ns_add_u32 s3, s3, s{sT2}\nv_lshl_add_u32 v{vW3}, v{fL8}, 10, v{fSW}\nv_add_u32 v{vW3}, s3, v{vW3}\ns_mov_b32 s{sOW3}, 0")
    def su_c():
        a(f"s_lshl_b32 s{sT2}, s{sX}, 12\ns_lshl_b32 s{sT3}, s{sS}, 5")
        a(f"v_mul_u32_u24 v{f0}, 192, v{fHR}\nv_add3_u32 v{f0}, v{f0}, v{fC8}, s{sT2}")
        a(f"s_lshl_b32 s3, s{sS}, 6\ns_add_u32 s3, s3, 64\nv_lshl_add_u32 v{f1}, v{fCH}, 5, s3\nv_add_u32 v{vA+8}, v{f0}, v{f1}")
        a(f"s_add_u32 s3, s{sT2}, s{sT3}\ns_add_u32 s3, s3, 3072\nv_lshl_add_u32 v{f1}, v{fHR}, 6, v{fC8}\nv_add_u32 v{f1}, s3, v{f1}")
        a(f"s_sub_u32 s3, 32, s{sT3}\nv_add_u32 v{f2}, s3, v{f0}\nv_cmp_eq_u32 vcc, 1, v{fCH}")
        a(f"v_lshl_add_u32 v{f3}, v{fCH}, 9, 0\nv_cndmask_b32 v{vA}, v{f1}, v{f2}, vcc\nv_add_u32 v{f3}, 256, v{f3}\nv_add_u32 v{vA+4}, v{vA}, v{f3}")
        for k in range(3):
            for j in range(1, 4): a(f"v_xor_b32 v{vA+4*k+j}, {j*4096}, v{vA+4*k}")
    def su_d():
        a(f"v_mov_b32 v{f3}, 0x40000000")
        a(f"s_mul_i32 s3, s{sC}, 6\ns_sub_u32 s3, s3, s{sS}\ns_lshl_b32 s3, s3, 5")
        a(f"v_lshl_add_u32 v{f0}, v{fTok}, 1, s3\nv_cmp_eq_u32 vcc, 1, v{fL4}\nv_cndmask_b32 v{f0}, v{f3}, v{f0}, vcc")
        a(f"buffer_load_ushort v{vB1a}, v{f0}, {srd(SB1)}, 0 offen")
        a(f"s_mul_i32 s3, s{sC}, 3\ns_add_u32 s3, s3, s{sS}\ns_add_u32 s3, s3, 1\ns_lshl_b32 s3, s3, 6")
        a(f"v_lshl_add_u32 v{f1}, v{fTok}, 1, s3\nv_lshl_add_u32 v{f1}, v{fH}, 25, v{f1}")
        T["b1"] = a.vm(f"buffer_load_ushort v{vB1b}, v{f1}, {srd(SB1)}, 0 offen")
    def su_e():
        a(f"s_lshl_b32 s{sT2}, s{sR}, 2\ns_add_u32 s{sT2}, s{sT2}, s{sT}")
        a(f"s_lshl_b32 s{sAct}, s{sC}, 1\ns_add_u32 s{sAct}, s{sAct}, s{sS}")
        a(f"s_lshl_b32 s{sT3}, s{sAct}, 17\ns_add_u32 s{sKVo0}, s{sT3}, {KBUF}")
        a(f"s_cmp_lt_u32 s{sC}, 8\ns_cselect_b32 s{sT3}, 10, 11\ns_cselect_b32 s3, 16, 10\ns_lshl_b32 s{sT3}, s{sT2}, s{sT3}\ns_add_u32 s{sKVo0}, s{sKVo0}, s{sT3}")
        a(f"s_lshl_b32 s3, 1, s3\ns_add_u32 s{sKVo1}, s{sKVo0}, s3")
        a(f"s_lshl_b32 s{sFl}, s{sAct}, 4\ns_add_u32 s{sFl}, s{sFl}, s{sR}\ns_lshl_b32 s{sFl}, s{sFl}, 7\ns_lshl_b32 s{sT3}, s{sT}, 3\ns_add_u32 s{sFl}, s{sFl}, s{sT3}\ns_add_u32 s{sFl}, s{sFl}, {FL_KV}")
        a(f"s_lshl_b32 s{sHL}, s{sT2}, 3\ns_lshr_b32 s{sT3}, s{sC}, 1\ns_add_u32 s{sHL}, s{sHL}, s{sT3}\ns_lshl_b32 s{sHL}, s{sHL}, 7\ns_and_b32 s{sT3}, s{sAct}, 3\ns_lshl_b32 s{sT3}, s{sT3}, 3\ns_add_u32 s{sHL}, s{sHL}, s{sT3}\ns_add_u32 s{sHL}, s{sHL}, {FL_H}")
        a(f"s_sub_i32 s{sI0}, 8, s{sT2}\ns_max_i32 s{sI0}, s{sI0}, 0")
        a(f"s_lshl_b32 s{sT3}, s{sT2}, 17\ns_add_u32 s{sT3}, s{sT3}, {ACT}")
        a(f"s_lshl_b32 s3, s{sAct}, 10\ns_add_u32 s{sOo}, s{sT3}, s3\ns_add_u32 s{sOo}, s{sOo}, {96*1024}")
        a(f"s_mul_i32 s3, s{sC}, {6*1024}\ns_add_u32 s{sHo}, s{sT3}, s3")
    def su_f():
        a(f"s_mov_b32 s{sSpin}, 0x40000")
        a(f"s_lshr_b32 s3, s{sC}, 3\ns_lshl_b32 s3, s3, 1\ns_and_b32 s{sTT3}, s{sW}, 1\ns_add_u32 s{sTT3}, s{sTT3}, s3")
        a(f"s_lshl_b32 s3, s{sR}, 2\ns_add_u32 s3, s3, s{sTT3}\ns_lshl_b32 s3, s3, 17\ns_add_u32 s{sAct}, s3, {ACT}\ns_lshl_b32 s3, s{sKq}, 10\ns_add_u32 s{sAct}, s{sAct}, s3")
    def masks(lo, hi):
        for i in range(lo, hi):
            m = 0
            for l in range(64):
                if 8*(i//4) + 4*(l//32) + i % 4 <= l % 32: m |= 1 << l
            a(f"s_mov_b32 s{16+2*i}, 0x{m & 0xffffffff:08x}\ns_mov_b32 s{17+2*i}, 0x{m >> 32:08x}")
    su_a()

    def flag_store(soff, tmp):
        a(f"v_mov_b64 {vr(tmp,2)}, s[{sN}:{sN+1}]")
        return lane0(f"buffer_store_dwordx2 {vr(tmp,2)}, off, {srd(SWS)}, s{soff} sc1")
    def poll_issue(voff, vtmp):
        return a.vm(f"buffer_load_dwordx2 {vr(vtmp,2)}, v{voff}, {srd(SWS)}, 0 offen sc1")
    def poll_check(tag, voff, vtmp):
        a.wait(vm=tag)
        a(f"v_cmp_ne_u64 vcc, s[{sN}:{sN+1}], {vr(vtmp,2)}")
        def slow():
            lp, dn = a.newlabel("L_poll"), a.newlabel("L_polld")
            a.label(lp)
            a(f"buffer_load_dwordx2 {vr(vtmp,2)}, v{voff}, {srd(SWS)}, 0 offen sc1")
            a(f"s_waitcnt vmcnt(0)\nv_cmp_ne_u64 vcc, s[{sN}:{sN+1}], {vr(vtmp,2)}\ns_cbranch_vccz {dn}")
            a(f"s_sleep 2\ns_sub_u32 s{sSpin}, s{sSpin}, 1\ns_cbranch_scc0 {lp}")
            a(f"s_mov_b32 s{sSpin}, 0")
            a.label(dn)
        rare("s_cbranch_vccnz", slow, 0, 0)

    def reads(i):
        buf = WB + 32*(i % 2)
        if i < 8:
            for j in range(4):
                a(f"ds_read_b128 {vr(XR+16*i+4*j,4)}, v{vAX+j} offset:{(i%4)*2*BLK}")
                a(f"ds_read_b64_tr_b16 {vr(buf+4*j,2)}, v{vAW+j} offset:{(i%4)*BLK}")
                a(f"ds_read_b64_tr_b16 {vr(buf+4*j+2,2)}, v{vAW+j} offset:{(i%4)*BLK+512}")
            for j in range(2): a(f"ds_read_b128 {vr(buf+16+4*j,4)}, v{vAG+j} offset:{i*128}")
        elif i < 16:
            base = (i % 4)*2*BLK
            for j in range(4):
                a(f"ds_read_b64_tr_b16 {vr(buf+8*j,2)}, v{vA+j} offset:{base}")
                a(f"ds_read_b64_tr_b16 {vr(buf+8*j+2,2)}, v{vA+4+j} offset:{base}")
                a(f"ds_read_b64_tr_b16 {vr(buf+8*j+4,2)}, v{vA+8+j} offset:{base}")
                t_ = a(f"ds_read_b64_tr_b16 {vr(buf+8*j+6,2)}, v{vA+8+j} offset:{base+768}")
                if j == 0: T["r0"] = t_
    def stats(q):
        buf = WB + 32*(q % 2); L = []
        if P["strip"] & 2: return L
        for e in range(8):
            x = XR+16*q+e; p = e % 2
            L.append(f"v_dot2c_f32_bf16 v{vS+p}, s{sONE}, v{x}")
            L.append(f"v_dot2c_f32_bf16 v{vS+2+p}, v{x}, v{x}")
            L.append(f"v_dot2c_f32_bf16 v{vS+4+p}, v{buf+16+e}, v{x}")
        return L
    def colsum(i, tmp):
        buf = WB + 32*(i % 2)
        if P["strip"] & 2: return
        for e in range(4):
            a(f"v_lshlrev_b32 v{tmp}, 16, v{buf+e}\nv_lshlrev_b32 v{tmp+1}, 16, v{buf+4+e}")
            a(f"v_and_b32 v{tmp+2}, s{sHM}, v{buf+e}\nv_and_b32 v{tmp+3}, s{sHM}, v{buf+4+e}")
            a(f"v_add_f32 v{vCS}, v{vCS}, v{tmp}\nv_add_f32 v{vCS+1}, v{vCS+1}, v{tmp+1}")
            a(f"v_add_f32 v{vCS}, v{vCS}, v{tmp+2}\nv_add_f32 v{vCS+1}, v{vCS+1}, v{tmp+3}")
    def p1_mfmas(q, isv):
        buf = WB + 32*(q % 2); L = []
        if P["strip"] & 8: return L
        for j in range(4):
            cin = "0" if (q == 0 and j == 0) else vr(ACC0,16)
            w, x = vr(buf+4*j,4), vr(XR+16*q+4*j,4)
            L.append(f"v_mfma_f32_32x32x16_bf16 {vr(ACC0,16)}, {x if isv else w}, {w if isv else x}, {cin}")
        return L
    def p2_mfmas(i):
        q = i - 8; buf = WB + 32*(i % 2); L = []
        if P["strip"] & 8: return L
        for j in range(4):
            first = (q == 0 and j == 0)
            L.append(f"v_mfma_f32_32x32x16_bf16 {vr(ACC1,16)}, {vr(buf+8*j,4)}, {vr(XR+16*q+4*j,4)}, {'0' if first else vr(ACC1,16)}")
            L.append(f"v_mfma_f32_32x32x16_bf16 {vr(ACC2,16)}, {vr(buf+8*j+4,4)}, {vr(XR+16*q+4*j,4)}, {'0' if first else vr(ACC2,16)}")
        return L
    def kv_setup():
        a(f"s_lshl_b32 s3, s{sC}, 17\ns_add_u32 s{sT2}, s3, {KBUF}\ns_lshl_b32 s{sT3}, s{sKq}, 16\ns_add_u32 s{sT2}, s{sT2}, s{sT3}")
        a(f"s_add_u32 s3, s3, {VBUF}\ns_cmp_lt_u32 s{sW}, 4\ns_cselect_b32 s{sKi0}, s{sT2}, s3")
        a(f"s_and_b32 s3, s{sW}, 1\ns_cselect_b32 s3, 6, 0\ns_lshl_b32 s{sT2}, s{sR}, 2\ns_add_u32 s3, s3, s{sT2}\ns_sub_u32 s3, s3, 8")
        a(f"s_mul_i32 s{sT3}, s{sT}, 6\ns_lshl_b32 s{sT2}, s{sR}, 3\ns_add_u32 s{sT3}, s{sT3}, s{sT2}\ns_sub_u32 s{sT3}, s{sT3}, 16")
        a(f"s_cmp_lt_u32 s{sW}, 4\ns_cselect_b32 s{sKi1}, s3, s{sT3}")
        a(f"s_lshl_b32 s3, s{sKi1}, 10\ns_add_u32 s{sKi0}, s{sKi0}, s3\ns_mul_i32 s{sKi2}, s{sW}, 6144")
    def kv_pair(e):
        a(f"s_add_u32 s{sKt}, s{sKi0}, {e*1024}\ns_cmp_lt_i32 s{sKi1}, {-e}\ns_cselect_b32 s{sKt}, 0x40000000, s{sKt}")
        a(f"s_add_u32 m0, s{sKi2}, {KL + e*1024}")
        a(f"buffer_load_dwordx4 v{vL16}, {srd(SWS)}, s{sKt} offen sc1 lds")
        return a.vm(f"buffer_load_dwordx4 v{vL16}, {srd(SWS)}, s{sKt} offen offset:1024 sc1 lds")

    PM = 128; VF = 136; vAK, vAV, vFl, vB2a, vB2b = 152, 153, 154, 155, 156
    vM, vPo, vA3 = 16, 18, 20
    PP = 160; HF = 168
    SA, SB, S0, KF, vQ, ZB, OA = 32, 48, 64, 80, 92, 96, 112
    PF = SA
    def at_setup1():
        a(f"v_mov_b32 v{PP}, 0xffff")
        for e in range(8):
            a(f"v_cndmask_b32 v{PM+e}, 0, v{PP}, s[{16+4*e}:{17+4*e}]\nv_cndmask_b32 v{PM+e}, v{PM+e}, -1, s[{18+4*e}:{19+4*e}]")
    def at_setup2a():
        for e in range(13): a(f"v_mov_b32 v{VF+e}, s{sONE}")
    def at_setup2():
        for e in range(13, 16): a(f"v_mov_b32 v{VF+e}, s{sONE}")
        a(f"s_mul_i32 s3, s{sS}, 12288\ns_lshl_b32 s{sT2}, s{sT}, 10\ns_add_u32 s3, s3, s{sT2}\ns_add_u32 s3, s3, {KL}\nv_add_u32 v{vAK}, s3, v{vL16}")
        a(f"s_lshl_b32 s3, s{sT}, 11\ns_lshl_b32 s{sT2}, s{sS}, 8\ns_add_u32 s3, s3, s{sT2}\ns_add_u32 s3, s3, {VL}\nv_and_b32 v{vAV}, 0x2f0, v{vL16}\nv_add_u32 v{vAV}, s3, v{vAV}")
    def at_setup3():
        a(f"s_lshl_b32 s3, s{sR}, 2\ns_add_u32 s3, s3, s{sTT3}\ns_lshl_b32 s3, s3, 10\ns_add_u32 s3, s3, {FL_H}\nv_bfe_u32 v{vFl}, v0, 2, 3\nv_lshl_add_u32 v{vFl}, v{vFl}, 7, s3\nv_and_b32 v{PP}, 3, v0\nv_lshl_add_u32 v{vFl}, v{PP}, 3, v{vFl}")
        a(f"s_and_b32 s3, s{sC}, 7\ns_lshl_b32 s3, s3, 7\ns_cmp_eq_u32 s{sKq}, 0\ns_cselect_b32 s3, s3, 0x40000000")
        a(f"v_lshlrev_b32 v{PP}, 1, v0\nv_lshlrev_b32 v{PP+1}, 20, v0\nv_and_b32 v{PP+1}, 0x2000000, v{PP+1}\nv_add3_u32 v{PP}, v{PP}, v{PP+1}, s3")
        a(f"buffer_load_ushort v{vB2a}, v{PP}, {srd(SB2)}, 0 offen")
        T["b2"] = a.vm(f"buffer_load_ushort v{vB2b}, v{PP}, {srd(SB2)}, 0 offen offset:64")
        a(f"s_mov_b32 s{sEX}, 0x0000ffff\ns_mov_b32 s{sEX+1}, 0x0000ffff")
    def hilo(dst, x, t0):
        a(f"v_cvt_pk_bf16_f32 v{t0}, v{x}, v{x}\nv_and_b32 v{t0}, 0xffff0000, v{t0}\nv_sub_f32 v{t0+1}, v{x}, v{t0}\nv_cvt_pk_bf16_f32 v{dst}, v{t0}, v{t0+1}")

    BA = WB + 16; AU = WB + 8
    def stage(i, isv):
        ts(f"st{i} pre", fine=True)
        if i < 16:
            t = [tagD[i]]
            if i == 0: t.append(tagGW)
            a.wait(vm=t)
        ts(f"st{i} vm", fine=True)
        a("s_barrier")
        if i in (0, 8, 16): ts(f"st{i} go")
        def fill():
            pf(pfat(i))
            if i == 9: T["st"] = a.ds(f"ds_read_b128 {vr(vT,4)}, v{vT}")
            if i == 16:
                for e in range(4): T["cs"] = a.ds(f"ds_read_b64 {vr(WB+2*e,2)}, v{vT} offset:{e*512}")
            if i == 2:
                a(f"v_readfirstlane_b32 s{sN}, v{vZ}\ns_add_u32 s{sN}, s{sN}, 1\ns_xor_b32 s{sN+1}, s{sN}, 0x5bd1e995")
            if i == 5: a(f"s_mov_b32 s{sHM}, 0xffff0000")
            if i == 0: su_b()
            if i == 1: su_c()
            if i == 3: su_d()
            if i == 4: su_e()
            if i == 6: su_f(); masks(0, 6)
            if i == 7: masks(6, 16)
            if i == 9:
                a.wait(lg=T["st"])
                s1, s2, sg = vT, vT+1, vT+2
                a(f"v_add_f32 v{s1}, v{vS}, v{s1}\nv_add_f32 v{s2}, v{vS+1}, v{s2}\nv_add_f32 v{sg}, v{vS+2}, v{sg}")
                m, sd = vMS, vMS+1
                a(f"v_mul_f32 v{m}, {hx(-1.0/512)}, v{s1}\nv_mul_f32 v{s2}, {hx(1.0/512)}, v{s2}")
                a(f"v_fma_f32 v{s2}, -v{m}, v{m}, v{s2}\nv_max_f32 v{s2}, 0, v{s2}\nv_add_f32 v{s2}, {hx(1e-5)}, v{s2}")
                a(f"v_sqrt_f32 v{sd}, v{s2}\nv_rsq_f32 v{s1}, v{s2}\nv_mul_f32 v{sg}, {hx(LOG2E)}, v{sg}")
            if i == 10:
                s1, s2, sg = vT, vT+1, vT+2; rs = s1; sd = vMS+1
                a(f"v_exp_f32 v{s2}, -v{sg}\nv_exp_f32 v{sg}, v{sg}")
                K0 = -2*0.7978845608028654*LOG2E; K1 = K0*0.044715
                a(f"v_mul_f32 v{vA01}, {hx(K0)}, v{rs}\nv_mul_f32 v{vA01+1}, v{rs}, v{rs}")
                a(f"v_mul_f32 v{vA01+1}, v{vA01+1}, v{rs}\nv_mul_f32 v{vA01+1}, {hx(K1)}, v{vA01+1}")
                a(f"v_add_f32 v{s2}, 1.0, v{s2}\nv_min_f32 v{sg}, {hx(1e30)}, v{sg}\nv_add_f32 v{sg}, 1.0, v{sg}")
                a(f"v_rcp_f32 v{vIG+1}, v{s2}\nv_mul_f32 v{vIG}, v{sd}, v{sg}\nv_rcp_f32 v{sg}, v{sg}")
                a(f"v_lshrrev_b32 v{s1}, 2, v{vL16}\nv_and_b32 v{s1}, 0x7c, v{s1}\ns_lshl_b32 s3, s{sT}, 7\ns_add_u32 s3, s3, {OMGL}\nv_add_u32 v{s1}, s3, v{s1}")
                a(f"ds_write_b32 v{s1}, v{sg}")
            if i == 11:
                a(f"v_bfe_u32 v{vT}, v0, 2, 2\nv_min_u32 v{vT}, 2, v{vT}\nv_sub_u32 v{vT}, s{sR}, v{vT}\nv_max_i32 v{vT}, 0, v{vT}")
                a(f"v_and_b32 v{vT+1}, 16, v0\nv_lshlrev_b32 v{vT+1}, 4, v{vT+1}\ns_lshl_b32 s3, s{sC}, 4\ns_add_u32 s3, s3, {FL_KV//128}\nv_add3_u32 v{vT}, v{vT}, v{vT+1}, s3\nv_lshlrev_b32 v{vT}, 7, v{vT}")
                a(f"v_and_b32 v{vT+1}, 3, v0\nv_lshl_add_u32 v{vT}, v{vT+1}, 3, v{vT}")
            if i == 12: at_setup1()
            if i == P["kvpoll"]: T["kvp"] = poll_issue(vT, vT+2)
            if i == 13: kv_setup(); at_setup2a()
            if i == 14: at_setup2(); at_setup3()
            if i == P["kvpub"]:
                if not (P["strip"] & 16): a.wait(vm=T["kv"])
                flag_store(sFl, vT); ts("kv published")
            if 8 <= i < 16 and not (P["strip"] & 1):
                a.wait(lg=T["r0"]); colsum(i, 88 if i == 8 else XR+16*(i-9))
            if i == P["kvchk"] and not (P["strip"] & 16): poll_check(T["kvp"], vT, vT+2)
            if i == 15:
                a(f"s_lshl_b32 s3, s{sW}, 9\ns_add_u32 s3, s3, {CSL}\nv_lshrrev_b32 v{vT+1}, 1, v{vL16}\nv_add_u32 v{vT}, s3, v{vT+1}")
                a(f"ds_write_b64 v{vT}, {vr(vCS,2)}")
                a(f"s_lshl_b32 s3, s{sS}, 11\ns_add_u32 s3, s3, {CSL}\nv_add_u32 v{vT}, s3, v{vT+1}")
            if i == 16:
                hilo(BA, vMS, vT); hilo(BA+2, vMS+1, vT+2)
                a(f"v_mov_b32 v{BA+1}, v{BA}\nv_mov_b32 v{BA+3}, 0")
                a.wait(lg=T["cs"], vm=T["b1"])
                for e in range(2): a(f"v_add_f32 v{WB+e}, v{WB+e}, v{WB+2+e}\nv_add_f32 v{WB+4+e}, v{WB+4+e}, v{WB+6+e}")
                for e in range(2): a(f"v_add_f32 v{WB+e}, v{WB+e}, v{WB+4+e}")
                a(f"s_mov_b32 vcc_lo, 0xffff0000\ns_mov_b32 vcc_hi, 0xffff0000\nv_cndmask_b32 v{WB}, 0, v{WB}, vcc")
                for e, (cs, b1) in enumerate(((WB, vB1a), (WB+1, vB1b))):
                    d = AU + 4*e
                    a(f"v_cvt_pk_bf16_f32 v{d}, v{cs}, v{cs}\nv_and_b32 v{d+3}, 0xffff0000, v{d}\nv_sub_f32 v{d+3}, v{cs}, v{d+3}\nv_cvt_pk_bf16_f32 v{d+1}, v{d+3}, v{d+3}")
                    a(f"v_lshl_or_b32 v{d+2}, v{b1}, 16, v{b1}\nv_mov_b32 v{d+3}, 0")
        def dmas():
            if i + 3 < 8: dma_p1(i+3)
            elif i + 3 < 16: dma_p2(i+3)
            if i == 13: dma_w3(0, 18); dma_w3(1, 8); dma_w3(2, 9)
            if i == P["kvchk"] + 1:
                for e in (0, 2): T["kvin"] = kv_pair(e)
            if i == P["kvchk"] + 2:
                T["kvin"] = kv_pair(4); dma_w3(3, 10)
            if i == 16: dma_w3(4, 11); dma_w3(5, 0); dma_w3(6, 1)
        R = a.cap(lambda: reads(i)); F = a.cap(fill); D = a.cap(dmas)
        if P["strip"] & 1: R = []
        if P["strip"] & 4: D = [x for x in D if not (isinstance(x, Ins) and x.kind == "vmem" and x not in tagD.values() and x not in tagW3.values() and x is not T.get("kvin"))]
        if i == 0: a.mix([(R, 0, 1), (D, 0, 1), (F, 0, 1)], gaps=1)
        elif i <= 8:
            a.mix([(p1_mfmas(i-1, isv), 0, 1), (R, 0, 1), (D, 0, 1), (F, 0.25 if i == 8 else 0, 1)], gaps=4)
            st = stats(i-1)
            if i == 8:
                KP = WB + 32
                for x in st[:6]: a(x)
                for e in range(8): a(f"v_cvt_pk_bf16_f32 v{KP+e}, v{ACC0+2*e}, v{ACC0+2*e+1}")
                a(f"buffer_store_dwordx4 {vr(KP,4)}, v{vL16}, {srd(SWS)}, s{sKVo0} offen sc1")
                T["kv"] = a.vm(f"buffer_store_dwordx4 {vr(KP+4,4)}, v{vL16}, {srd(SWS)}, s{sKVo1} offen sc1")
                st = st[6:]
            for x in st: a(x)
        else:
            a.mix([(p2_mfmas(i-1), 0, 1), (R, 0, 0.75), (D, 0, 0.75), (F, 0.25 if i == 15 else 0.125, 0.875)], gaps=8)
        if i == 8:
            a(f"v_add_f32 v{vS}, v{vS}, v{vS+1}\nv_add_f32 v{vS+1}, v{vS+2}, v{vS+3}\nv_add_f32 v{vS+2}, v{vS+4}, v{vS+5}")
            a(f"v_and_b32 v{vT}, 0x1f0, v{vL16}\ns_lshl_b32 s3, s{sW}, 9\ns_add_u32 s3, s3, {STL}\nv_add_u32 v{vT+1}, s3, v{vT}")
            for e in range(3): a(f"v_mov_b32 v{vS+3+e}, v{vS+e}")
            a(f"s_xor_b32 s3, s{sW}, 4\ns_lshl_b32 s3, s3, 9\ns_add_u32 s3, s3, {STL}\nv_add_u32 v{vT}, s3, v{vT}")
            for e in range(3): a(f"v_permlane32_swap_b32 v{vS+e}, v{vS+3+e}")
            for e in range(3): a(f"v_add_f32 v{vS+e}, v{vS+e}, v{vS+3+e}")
            a(f"ds_write_b128 v{vT+1}, {vr(vS,4)}")
        if i < 16: a("s_waitcnt lgkmcnt(0)")
    stage(0, False)
    a(f"s_cmp_ge_u32 s{sC}, 8\ns_cbranch_scc1 L_p1v")
    k = a.save(); st0 = (nts[0], len(TSN))
    for i in range(1, 9): stage(i, False)
    a("s_branch L_p1j")
    k2 = a.save(); a.restore(k); a.label("L_p1v")
    nts[0] = st0[0]; del TSN[st0[1]:]
    for i in range(1, 9): stage(i, True)
    a.label("L_p1j"); a.merge(k2)
    for i in range(9, 17): stage(i, False)
    a(f"v_mfma_f32_32x32x16_bf16 {vr(ACC2,16)}, {vr(AU+4,4)}, {vr(BA,4)}, {vr(ACC2,16)}")
    a(f"v_mfma_f32_32x32x16_bf16 {vr(ACC1,16)}, {vr(AU,4)}, {vr(BA,4)}, {vr(ACC1,16)}")
    ts("pass2 done")
    w3q = [(7,2),(8,3),(9,4),(10,5),(11,6),(12,7)]
    def w3next():
        if w3q: dma_w3(*w3q.pop(0))
    w3next(); w3next()
    a(f"s_lshl_b32 s{sT2}, s{sS}, 11\ns_add_u32 s{sT2}, s{sHo}, s{sT2}\ns_lshl_b32 s3, s{sS}, 10\ns_sub_u32 s{sT3}, s{sHo}, s3")
    G0 = 168; HP = 192
    src = [ACC2+2*e for e in range(8)] + [ACC1+8+2*e for e in range(4)]
    for gidx in range(3):
        ss = src[4*gidx:4*gidx+4]; tt = [G0+8*gidx+2*e for e in range(4)]
        for s_, t_ in zip(ss, tt): a(f"v_pk_mul_f32 {vr(t_,2)}, {vr(s_,2)}, {vr(s_,2)}")
        for s_, t_ in zip(ss, tt): a(f"v_pk_fma_f32 {vr(t_,2)}, {vr(t_,2)}, {vr(vA01,2)}, {vr(vA01,2)} op_sel:[0,1,0] op_sel_hi:[1,1,0]")
        for s_, t_ in zip(ss, tt): a(f"v_pk_mul_f32 {vr(t_,2)}, {vr(t_,2)}, {vr(s_,2)}")
        w3next()
        for t_ in tt: a(f"v_exp_f32 v{t_}, v{t_}\nv_exp_f32 v{t_+1}, v{t_+1}")
        w3next()
        for t_ in tt: a(f"v_pk_fma_f32 {vr(t_,2)}, {vr(t_,2)}, {vr(vIG,2)}, {vr(vIG,2)} op_sel_hi:[1,0,0]")
        for t_ in tt: a(f"v_rcp_f32 v{t_}, v{t_}\nv_rcp_f32 v{t_+1}, v{t_+1}")
        for s_, t_ in zip(ss, tt): a(f"v_pk_mul_f32 {vr(t_,2)}, {vr(t_,2)}, {vr(s_,2)}")
        for e, t_ in enumerate(tt): a(f"v_cvt_pk_bf16_f32 v{HP+4*gidx+e}, v{t_}, v{t_+1}")
        if gidx < 2: a(f"buffer_store_dwordx4 {vr(HP+4*gidx,4)}, v{vL16}, {srd(SWS)}, s{sT2} offen offset:{1024*(2+gidx)} sc1")
        else: T["h"] = a.vm(f"buffer_store_dwordx4 {vr(HP+8,4)}, v{vL16}, {srd(SWS)}, s{sT3} offen offset:1024 sc1")
    QS = 0.25*LOG2E
    a(f"s_mov_b32 s{sT2}, {hx(QS)}\ns_mov_b32 s{sT3}, {hx(QS)}")
    for e in range(4): a(f"v_pk_mul_f32 {vr(ACC1+2*e,2)}, {vr(ACC1+2*e,2)}, s[{sT2}:{sT3}]")
    for e in range(4): a(f"v_cvt_pk_bf16_f32 v{vQ+e}, v{ACC1+2*e}, v{ACC1+2*e+1}")
    ts("gelu done")
    a.wait(vm=[tagW3[P["w3go"]], T["kvin"], T["b2"]])
    a("s_barrier")
    ts("attn go")
    if P["prio"]: a("s_setprio 3")
    def zup():
        lp, dn = a.newlabel("L_zp"), a.newlabel("L_zd")
        a(f"v_lshrrev_b32 v{HF}, 4, v0\nv_and_b32 v{HF+1}, 15, v0\nv_lshl_add_u32 v{HF}, v{HF}, 5, v{HF+1}\nv_lshlrev_b32 v{HF}, 7, v{HF}\nv_add_u32 v{HF}, {FL_KV}, v{HF}")
        a.label(lp)
        a(f"s_mov_b32 s3, 0")
        for e in range(4):
            a(f"buffer_load_dwordx2 {vr(HF+2+2*e,2)}, v{HF}, {srd(SWS)}, s3 offen sc1\ns_add_u32 s3, s3, {128*128}")
        a("s_waitcnt vmcnt(0)")
        a(f"v_cmp_ne_u64 vcc, s[{sN}:{sN+1}], {vr(HF+2,2)}")
        for e in range(1, 4): a(f"v_cmp_ne_u64 s[{sT2}:{sT3}], s[{sN}:{sN+1}], {vr(HF+2+2*e,2)}\ns_or_b64 vcc, vcc, s[{sT2}:{sT3}]")
        a(f"s_cbranch_scc0 {dn}")
        a(f"s_sleep 4\ns_sub_u32 s{sSpin}, s{sSpin}, 1\ns_cbranch_scc0 {lp}\ns_mov_b32 s{sSpin}, 0")
        a.label(dn)
        a(f"v_mov_b32 v{HF}, s{sN}")
        lane0(f"buffer_store_dword v{HF}, off, {srd(SWS)}, 0 sc1")
    a(f"s_lshl_b32 s3, s2, 3\ns_add_u32 s3, s3, s{sW}\ns_cmp_eq_u32 s3, {57*8}"); rare("s_cbranch_scc1", zup, 0, 1)
    def kread(i, buf=None): return a.ds(f"ds_read_b128 {vr(KF+4*(i%3) if buf is None else buf,4)}, v{vAK} offset:{i*1024}")
    def zfill(val2):
        for e in range(8): a(f"v_mov_b64 {vr(ZB+2*e,2)}, {val2}")
    def zswitch(i, val2):
        a(f"s_cmp_eq_u32 s{sI0}, {i}"); rare("s_cbranch_scc1", lambda: zfill(val2), 7, 1)
    def zinit(val2):
        zfill(val2)
        def ninf():
            a(f"v_mov_b32 v{vT}, 0xff800000\nv_mov_b32 v{vT+1}, 0xff800000"); zfill(vr(vT,2))
        a(f"s_cmp_gt_u32 s{sI0}, 0"); rare("s_cbranch_scc1", ninf, 0, 1)
    def sbuf(i): return S0 if i == 0 else (SA if i % 2 else SB)
    def smfma(i, val2):
        if i > 0: zswitch(i, val2)
        a(f"v_mfma_f32_32x32x16_bf16 {vr(sbuf(i),16)}, {vr(KF+4*(i%3),4)}, {vr(vQ,4)}, {vr(ZB,16)}")
    def merge_s():
        for e in range(16): a(f"v_cndmask_b32 v{SB+e}, v{S0+e}, v{SB+e}, s[{16+2*e}:{17+2*e}]")
    def vread(i, buf):
        a(f"s_mov_b64 exec, s[{sEX}:{sEX+1}]")
        a.ds(f"ds_read_b128 {vr(VF+8*buf,4)}, v{vAV} offset:{i*2048}")
        t_ = a.ds(f"ds_read_b128 {vr(VF+8*buf+4,4)}, v{vAV} offset:{i*2048+1024}")
        a("s_mov_b64 exec, -1")
        return t_
    def passA():
        tk = {i: kread(i) for i in range(3)}
        zinit("0")
        a.wait(lg=tk[0]); smfma(0, "0"); tk[3] = kread(3)
        a.wait(lg=tk[1]); smfma(1, "0"); tk[4] = kread(4)
        for i in range(1, 9):
            if i < 8:
                a.wait(lg=tk[i+1]); smfma(i+1, "0")
                if i + 4 < 9: tk[i+4] = kread(i+4)
            else: merge_s()
            b = sbuf(i)
            for e in range(8):
                if i == 1 and e < 2: a(f"v_max_f32 v{vM+e}, v{b+2*e}, v{b+2*e+1}")
                else: a(f"v_max3_f32 v{vM+e%2}, v{b+2*e}, v{b+2*e+1}, v{vM+e%2}")
        a(f"v_max_f32 v{vM}, v{vM}, v{vM+1}")
        a(f"v_mov_b32 v{vT}, v{vM}\nv_permlane32_swap_b32 v{vM}, v{vT}\nv_max_f32 v{vM}, v{vM}, v{vT}\nv_sub_f32 v{vM}, 0, v{vM}\nv_mov_b32 v{vM+1}, v{vM}")
    def passB(tk, hook):
        m2 = vr(vM, 2)
        zinit(m2)
        a.wait(lg=tk[0]); smfma(0, m2); tk[3] = kread(3)
        a.wait(lg=tk[1]); smfma(1, m2); tk[4] = kread(4)
        tv = {1: vread(1, 1)}
        for i in range(1, 9):
            if i < 8:
                a.wait(lg=tk[i+1]); smfma(i+1, m2)
                if i + 4 < 9: tk[i+4] = kread(i+4)
                tv[i+1] = vread(i+1, (i+1) % 2)
            else:
                tv[0] = vread(0, 1)
                merge_s()
            b = sbuf(i)
            for e in range(16):
                a(f"v_exp_f32 v{b+e}, v{b+e}")
                hook(i, e)
            for e in range(8): a(f"v_cvt_pk_bf16_f32 v{PP+e}, v{b+2*e}, v{b+2*e+1}")
            if i == 8:
                for e in range(8): a(f"v_bfi_b32 v{PF+e}, v{PM+e}, 0, v{PP+e}\nv_and_b32 v{PP+e}, v{PM+e}, v{PP+e}")
            a.wait(lg=tv[i])
            vb = VF + 8*(i % 2)
            a(f"v_mfma_f32_32x32x16_bf16 {vr(OA,16)}, {vr(vb,4)}, {vr(PP,4)}, {'0' if i == 1 else vr(OA,16)}")
            a(f"v_mfma_f32_32x32x16_bf16 {vr(OA,16)}, {vr(vb+4,4)}, {vr(PP+4,4)}, {vr(OA,16)}")
            if i == 8:
                a.wait(lg=tv[0])
                a(f"v_mfma_f32_32x32x16_bf16 {vr(OA,16)}, {vr(VF+8,4)}, {vr(PF,4)}, {vr(OA,16)}")
                a(f"v_mfma_f32_32x32x16_bf16 {vr(OA,16)}, {vr(VF+12,4)}, {vr(PF+4,4)}, {vr(OA,16)}")
    t8 = kread(8, PP)
    tk = {i: kread(i) for i in range(3)}
    a(f"v_mov_b64 {vr(vM,2)}, 0")
    a.wait(lg=t8)
    for e in range(4): a(f"v_dot2c_f32_bf16 v{vM+e%2}, v{PP+e}, v{vQ+e}")
    a(f"v_add_f32 v{vM}, v{vM}, v{vM+1}")
    a(f"v_mov_b32 v{vM+1}, v{vM}\nv_permlane32_swap_b32 v{vM}, v{vM+1}\nv_add_f32 v{vM}, v{vM}, v{vM+1}\nv_sub_f32 v{vM}, 0, v{vM}\nv_mov_b32 v{vM+1}, v{vM}")
    tagA = []
    def aload():
        b = len(tagA)
        if b >= 30: return
        if b == 22: a(f"s_add_u32 s{sAct}, s{sAct}, {(96-88)*1024}")
        tagA.append(a.vm(f"buffer_load_dwordx4 {vr(HF+4*(b%22),4)}, v{vL16}, {srd(SWS)}, s{sAct} offen sc1"))
        a(f"s_add_u32 s{sAct}, s{sAct}, 4096")
    def hook(i, e):
        if P["prio"] and e == 0 and i in (3, 5, 7): a(f"s_setprio {3 - (i-1)//2}")
        if i == P["hpub"] and e == 15:
            a.wait(vm=T["h"]); flag_store(sHL, vT); ts("h published")
        if i == P["hpoll"] and e == 8: T["hp"] = poll_issue(vFl, vPo)
        if i == P["hchk"] and e == 0:
            poll_check(T["hp"], vFl, vPo); ts("h flags ok")
        if i >= P["hchk"] and e % 4 == 1: aload()
    passB(tk, hook)
    assert not w3q
    A3 = 32; W3F = 64; NB = 5; INIT = 136
    a(f"v_lshrrev_b32 v{vT}, 5, v0\nv_bfe_u32 v{vT+1}, v0, 2, 2\nv_lshl_add_u32 v{vT}, v{vT}, 2, v{vT+1}\nv_lshlrev_b32 v{vT}, 7, v{vT}")
    a(f"v_lshrrev_b32 v{vT+1}, 1, v{vT+1}\nv_lshl_add_u32 v{vT}, v{vT+1}, 6, v{vT}\nv_bfe_u32 v{vT+1}, v0, 4, 1\nv_lshl_add_u32 v{vT}, v{vT+1}, 5, v{vT}")
    a(f"v_and_b32 v{vT+1}, 3, v0\nv_lshl_add_u32 v{vT}, v{vT+1}, 3, v{vT}\ns_lshl_b32 s3, s{sKq}, 11\nv_add_u32 v{vA3}, s3, v{vT}\nv_xor_b32 v{vA3+1}, 64, v{vA3}")
    a(f"s_mov_b32 s3, {hx(2.0**30) if not P['forcefb'] else hx(1.5)}\nv_cmp_nle_f32 vcc, v{OA+8}, s3")
    def fallback():
        passA()
        tk = {i: kread(i) for i in range(3)}
        passB(tk, lambda i, e: None)
        a("s_nop 12")
    rare("s_cbranch_vccnz", fallback, 0, 1)
    a(f"v_rcp_f32 v{vT}, v{OA+8}\nv_mul_f32 v{vT}, v{vT}, v{vIG+1}")
    for e in range(4): a(f"v_pk_mul_f32 {vr(OA+2*e,2)}, {vr(OA+2*e,2)}, {vr(vT,2)} op_sel_hi:[1,0]")
    for e in range(4): a(f"v_cvt_pk_bf16_f32 v{PP+e}, v{OA+2*e}, v{OA+2*e+1}")
    T["o"] = a.vm(f"buffer_store_dwordx4 {vr(PP,4)}, v{vL16}, {srd(SWS)}, s{sOo} offen sc1")
    ts("attn done")
    if P["hchk"] > 8:
        poll_check(T["hp"], vFl, vPo)
        ts("h flags ok")
    while len(tagA) < P["hahead"]: aload()
    a(f"v_lshrrev_b32 v{vT+2}, 2, v{vL16}\nv_and_b32 v{vT+2}, 0x7c, v{vT+2}\ns_lshl_b32 s3, s{sTT3}, 7\ns_add_u32 s3, s3, {OMGL}\nv_add_u32 v{vT+2}, s3, v{vT+2}")
    tom = a.ds(f"ds_read_b32 v{vT+2}, v{vT+2}")
    win = {vA3: 0, vA3+1: 0}
    def prewin(reg, lo, hi):
        cur = win[reg]
        if not (0 <= lo - cur and hi - cur <= 65535-16):
            new = min((lo // 8192) * 8192, 98304); d = new - cur
            a(f"v_add_u32 v{reg}, {d}, v{reg}" if d >= 0 else f"v_subrev_u32 v{reg}, {-d}, v{reg}"); win[reg] = new
    def w3reads(b, buf):
        base = w3slot[b]*BLK
        for r in (vA3, vA3+1): prewin(r, base, base+1024)
        for ct in range(2):
            a.ds(f"ds_read_b64_tr_b16 {vr(buf+4*ct,2)}, v{vA3+ct} offset:{base-win[vA3+ct]}")
            t_ = a.ds(f"ds_read_b64_tr_b16 {vr(buf+4*ct+2,2)}, v{vA3+ct} offset:{base+1024-win[vA3+ct]}")
        return t_
    for e, b2 in enumerate((vB2a, vB2b)):
        d = INIT + 4*e
        a(f"v_lshl_or_b32 v{d}, v{b2}, 16, v{b2}\nv_mov_b32 v{d+1}, 0\nv_mov_b64 {vr(d+2,2)}, 0")
    a(f"v_mov_b32 v{INIT+9}, 0\nv_mov_b64 {vr(INIT+10,2)}, 0")
    a.wait(lg=tom)
    hilo(INIT+8, vT+2, vT)
    a(f"v_mfma_f32_32x32x16_bf16 {vr(A3,16)}, {vr(INIT,4)}, {vr(INIT+8,4)}, 0")
    a(f"v_mfma_f32_32x32x16_bf16 {vr(A3+16,16)}, {vr(INIT+4,4)}, {vr(INIT+8,4)}, 0")
    tr = {}
    AHEAD = 3
    sync = {5: (12, [(13,12),(14,13),(15,14),(16,15),(17,16),(18,17),(19,18),(20,8),(21,9)]),
            9: (None, [(22,0),(23,1),(24,2),(25,3)]),
            13: (18, [(26,4),(27,5),(28,6),(29,7)]),
            19: (23, []), 24: (29, [])}
    pend = []
    def issue_read(b):
        if b in sync:
            landed, ref = sync[b]
            a("s_waitcnt lgkmcnt(0)")
            if landed is not None: a.wait(vm=tagW3[landed])
            a("s_barrier")
            ts(f"X{b}")
            pend.extend(ref)
        tr[b] = w3reads(b, W3F + 8*(b % NB))
    for b in range(AHEAD): issue_read(b)
    vD = 104
    for b in range(30):
        if b + AHEAD < 30: issue_read(b + AHEAD)
        if b == P["opub"]:
            a.wait(vm=T["o"])
            a(f"s_add_u32 s{sHL}, s{sHL}, {FL_O-FL_H}")
            flag_store(sHL, vT)
            ts("o published")
        if b == P["opoll"]:
            a(f"v_add_u32 v{vFl}, {FL_O-FL_H}, v{vFl}")
            T["op"] = poll_issue(vFl, vPo)
        if b == P["ochk"]:
            poll_check(T["op"], vFl, vPo); ts("o flags ok")
        for _ in range(2):
            if (len(tagA) < 22 or b >= P["ochk"]) and len(tagA) < b + P["hahead"] + 1: aload()
        for _ in range(2):
            if pend: dma_w3(*pend.pop(0))
        if b == 20:
            a(f"v_and_b32 v{vT}, 31, v0\nv_lshlrev_b32 v{vT+1}, 8, v{vT}\ns_lshl_b32 s3, s{sW}, 13\ns_add_u32 s3, s3, {RB}\nv_add_u32 v{vT+1}, s3, v{vT+1}")
            a(f"v_and_b32 v{vT}, 7, v0\nv_lshrrev_b32 v{vT+3}, 5, v0\nv_xor_b32 v{vT}, v{vT}, v{vT+3}\nv_lshl_add_u32 v{vD}, v{vT}, 4, v{vT+1}")
            for j in range(1, 4): a(f"v_xor_b32 v{vD+j}, {32*j}, v{vD}")
        if b == 22:
            a(f"v_lshrrev_b32 v{vT}, 3, v0\nv_and_b32 v{vT+1}, 7, v0\nv_lshlrev_b32 v{vT+1}, 1, v{vT+1}\nv_xor_b32 v{vT+1}, v{vT+1}, v{vT}")
            a(f"s_lshl_b32 s3, s{sT}, 11\ns_lshl_b32 s{sT2}, s{sS}, 13\ns_add_u32 s3, s3, s{sT2}\ns_add_u32 s3, s3, {RB}")
            a(f"v_lshlrev_b32 v{vT+2}, 8, v{vT}\nv_lshl_add_u32 v{vT+2}, v{vT+1}, 4, v{vT+2}\nv_add_u32 v{vT+2}, s3, v{vT+2}\nv_xor_b32 v{vT+3}, 16, v{vT+2}")
        if b == 23:
            a(f"s_lshl_b32 s3, s{sR}, 7\ns_lshr_b32 s{sT2}, s{sC}, 3\ns_lshl_b32 s{sT2}, s{sT2}, 6\ns_add_u32 s3, s3, s{sT2}\ns_lshl_b32 s{sT2}, s{sW}, 3\ns_add_u32 s3, s3, s{sT2}\ns_lshl_b32 s3, s3, 10")
            a(f"s_and_b32 s{sT2}, s{sC}, 7\ns_lshl_b32 s{sT2}, s{sT2}, 7\ns_add_u32 s{sOo}, s3, s{sT2}")
            a(f"v_lshlrev_b32 v{vT}, 10, v{vT}\nv_and_b32 v{vT+1}, 0x70, v{vL16}\nv_add_u32 v{vT}, v{vT}, v{vT+1}")
        a.wait(vm=tagA[b], lg=tr[b])
        def mm():
            for ct in range(2):
                a(f"v_mfma_f32_32x32x16_bf16 {vr(A3+16*ct,16)}, {vr(W3F+8*(b%NB)+4*ct,4)}, {vr(HF+4*(b%22),4)}, {vr(A3+16*ct,16)}")
        if b == 21:
            lk = a.newlabel("L_sk"); a(f"s_cmp_ge_u32 s{sKq}, 2\ns_cbranch_scc1 {lk}"); k = a.save()
            mm(); a.label(lk); a.merge(k)
            ts("h gemm done")
        else: mm()
    ts("o gemm done")
    for ct in range(2):
        for j in range(4): a(f"ds_write_b128 v{vD+j}, {vr(A3+16*ct+4*j,4)} offset:{128*ct}")
    a("s_waitcnt lgkmcnt(0)\ns_barrier")
    R0 = 64
    for kq in range(4):
        a(f"ds_read_b128 {vr(R0+8*kq,4)}, v{vT+2} offset:{kq*16384}\nds_read_b128 {vr(R0+8*kq+4,4)}, v{vT+3} offset:{kq*16384}")
    a("s_waitcnt lgkmcnt(4)")
    for e in range(4): a(f"v_pk_add_f32 {vr(R0+2*e,2)}, {vr(R0+2*e,2)}, {vr(R0+8+2*e,2)}")
    a("s_waitcnt lgkmcnt(0)")
    for e in range(4): a(f"v_pk_add_f32 {vr(R0+16+2*e,2)}, {vr(R0+16+2*e,2)}, {vr(R0+24+2*e,2)}")
    for e in range(4): a(f"v_pk_add_f32 {vr(R0+2*e,2)}, {vr(R0+2*e,2)}, {vr(R0+16+2*e,2)}")
    for e in range(4): a(f"v_cvt_pk_bf16_f32 v{R0+8+e}, v{R0+2*e}, v{R0+2*e+1}")
    a(f"buffer_store_dwordx4 {vr(R0+8,4)}, v{vT}, {srd(SOUT)}, s{sOo} offen" + (" sc1" if P["outsc1"] else ""))
    if debug:
        a("s_waitcnt vmcnt(0)")
        ts("end")
        a(f"s_memrealtime s[{sTS}:{sTS+1}]\ns_waitcnt lgkmcnt(0)\nv_writelane_b32 v{vTS}, s{sTS}, 62")
        a(f"v_writelane_b32 v{vTS}, s{sSpin}, 63")
        a(f"s_lshl_b32 s3, s2, 3\ns_add_u32 s3, s3, s{sW}\ns_lshl_b32 s3, s3, 8\ns_add_u32 s3, s3, {TSB}\nv_lshlrev_b32 v{vT}, 2, v0")
        a(f"buffer_store_dword v{vTS}, v{vT}, {srd(SWS)}, s3 offen")
    if P.get("delay"):
        a(f"s_memtime s[20:21]\ns_waitcnt lgkmcnt(0)\ns_add_u32 s22, s20, {P['delay']}")
        a.label("L_dly")
        a("s_memtime s[20:21]\ns_waitcnt lgkmcnt(0)\ns_sub_u32 s23, s22, s20\ns_cmp_gt_i32 s23, 0\ns_cbranch_scc1 L_dly")
    a.label("L_end")
    a("s_endpgm")
    a.raw("L_hot_end:")
    i = 0
    while i < len(tail):
        tail[i](); i += 1
    a.raw(f".set CODE_LAST, L_hot_end - {NAME} - 64")
    a.raw(f""".section .rodata,"a"
.p2align 6
.amdhsa_kernel {NAME}
  .amdhsa_next_free_vgpr 256
  .amdhsa_next_free_sgpr 102
  .amdhsa_accum_offset 256
  .amdhsa_group_segment_fixed_size 0
  .amdhsa_kernarg_size 96
  .amdhsa_user_sgpr_count 2
  .amdhsa_user_sgpr_kernarg_segment_ptr 1
  .amdhsa_system_sgpr_workgroup_id_x 1
.end_amdhsa_kernel""")
    return a.finish()

if __name__ == "__main__":
    import json
    P = json.loads(sys.argv[1]) if len(sys.argv) > 1 else {}
    out = sys.argv[2] if len(sys.argv) > 2 else "gated_mix__sliding_block__mixer_channel_mlp__prompt.s"
    txt, pads = gen(False, P)
    open(out, "w").write(txt)
    txt, pads2 = gen(True, P)
    open(sys.argv[3] if len(sys.argv) > 3 else "dbg.s", "w").write(txt)
    open("dbg_ts.txt", "w").write("\n".join(TSN))
    print("pads", pads, pads2, "nts", len(TSN))
```

```python
import sys, struct
from asmlib import *
NAME = "gated_mix__sliding_block__mixer_channel_mlp__prompt_kernel"
HDR = open("gated_mix__sliding_block__mixer_channel_mlp__prompt.s.ref").read().split("; Override launch")[0]

FL_KV = 0x10000; FL_H = 0x20000; FL_O = 0x30000
KBUF = 0x40000
VBUF = KBUF + 0x200000
ACT = VBUF + 0x200000
TSB = ACT + 0x800000
WS_SIZE = TSB + 0x80000
LDS_BYTES = 163840
BLK = 8192
MISC = 19 * BLK
GWL = MISC
STL = MISC + 1024
CSL = MISC + 1024
OMGL = MISC + 5120
KL = 12 * BLK; VL = KL + 24576
RB = 10 * BLK
LOG2E = 1.4426950408889634
def f2u(f): return struct.unpack("<I", struct.pack("<f", f))[0]
def hx(f): return "0x%08x" % f2u(f)
TSN = []
DEF = dict(pf=1, fine=False, hpub=2, hpoll=5, hchk=7, prio=1, w3go=6, outsc1=False, kvpub=10, kvpoll=12, kvchk=13, hahead=8, opub=3, opoll=12, ochk=15, forcefb=False, strip=0, pfpos=dict(x=-1,q=-1,w1=1,w2=1,wo=1))

def gen(debug=False, P=None):
    P = dict(DEF, **(P or {}))
    a = Asm()
    tail = []
    sW, sT, sS, sR, sC = 4, 5, 6, 7, 8
    sW1k, sW2k, sOX, sOKV, sOPa, sOPb, sPinc = 9, 10, 11, 12, 13, 14, 15
    sHM = 11
    SX, SQ, SW1, SPB, SW2, SWO, SWS, SOUT, SDBG, SB2 = 40, 44, 48, 52, 56, 60, 64, 68, 72, 76
    SGW, SB1 = 16, 20
    sKVo0, sKVo1, sHo, sOo, sAct, sOW3, sI0, sSpin, sT2, sT3, sONE, sKq = 80, 81, 82, 83, 84, 85, 86, 87, 88, 89, 90, 91
    sTS = 92; sEX = 94
    sX, sFl, sTT3, sHL = 96, 97, 98, 99
    sN = 100
    sKi0, sKi1, sKi2, sKt = 13, 14, 15, 12
    def srd(b): return f"s[{b}:{b+3}]"
    def vr(b, n): return f"v[{b}:{b+n-1}]"
    vL16, vW3, vPa, vPb, vB1a, vB1b, vTS = 1, 2, 3, 4, 5, 6, 7
    vCS = 8; vA01, vIG, vMS = 10, 12, 14; vS = 10
    vA = 16; vT = 28; WB = 32
    ACC1 = 96; ACC2 = 112; ACC0 = 112; XR = 128
    vXa, vXb, vKV, vZ, vAX, vAW, vAG = 96, 97, 98, 99, 100, 104, 108
    fL8, fS8, fL4, fSW, fRow, fH, fCH, fR4, fC8, fTok, fHR, f0, f1, f2, f3 = range(240, 255)
    nts = [0]
    del TSN[:]
    def ts(name="", fine=False):
        if not debug or (fine and not P["fine"]): return
        a(f"s_memtime s[{sTS}:{sTS+1}]\ns_waitcnt lgkmcnt(0)")
        a(f"v_writelane_b32 v{vTS}, s{sTS}, {nts[0]}")
        TSN.append(name); nts[0] += 1
    def srdw(b, n): a(f"s_mov_b32 s{b+2}, {n}\ns_mov_b32 s{b+3}, 0x00020000")
    def rare(cond_branch, body, padin=7, padout=1):
        lo, lb = a.newlabel("L_rare"), a.newlabel("L_back")
        a(f"{cond_branch} {lo}")
        a.label(lb)
        def emit():
            a.label(lo)
            a(f"s_nop {padin}")
            body()
            a(f"s_nop {padout}\ns_branch {lb}")
        tail.append(emit)
    def lane0(txt, count=True):
        a.atomic(True); a("s_mov_b64 exec, 1"); t_ = a(txt, count=count); a("s_mov_b64 exec, -1"); a.atomic(False)
        return t_

    a.raw(HDR.rstrip())
    a.raw(f"; @launch grid=(256,1,1) block=(512,1,1) lds={LDS_BYTES}")
    a.raw('.amdgcn_target "amdgcn-amd-amdhsa--gfx950"\n.text')
    a.raw(f".globl {NAME}\n.p2align 8\n.type {NAME},@function\n{NAME}:")
    a("s_cmp_ge_u32 s2, 0x100\ns_cbranch_scc1 L_end")
    a(f"s_load_dwordx2 s[{SX}:{SX+1}], s[0:1], 0\ns_load_dwordx2 s[{SQ}:{SQ+1}], s[0:1], 8\ns_load_dwordx2 s[{SGW}:{SGW+1}], s[0:1], 64")
    a(f"s_getpc_b64 s[{sEX}:{sEX+1}]")
    if P.get("fixed"): a(f"s_memrealtime s[72:73]")
    a("s_bfe_u32 s8, s2, 0x30003\nv_and_b32 v28, 31, v0\nv_lshlrev_b32 v28, 3, v28\nv_add_lshl_u32 v28, v28, s8, 7\nv_min_u32 v28, CODE_LAST, v28")
    a("v_cmp_gt_u32 vcc, 32, v0\ns_cbranch_vccz L_nocpf")
    a(f"global_load_dword v29, v28, s[{sEX}:{sEX+1}]", count=False)
    a.label("L_nocpf")
    a("v_lshrrev_b32 v30, 6, v0\nv_and_b32 v0, 63, v0")
    a(f"v_readfirstlane_b32 s{sW}, v30")
    a(f"s_and_b32 s3, s2, 6\ns_lshl_b32 s3, s3, 1\ns_lshr_b32 s{sR}, s2, 6\ns_add_u32 s{sR}, s{sR}, s3")
    a(f"s_and_b32 s3, s2, 1\ns_lshl_b32 s3, s3, 3\ns_add_u32 s{sC}, s{sC}, s3")
    a(f"v_lshrrev_b32 v{fL8}, 3, v0\nv_and_b32 v{fS8}, 7, v0\nv_lshrrev_b32 v{fL4}, 4, v0")
    a(f"s_lshl_b32 s{sW1k}, s{sW}, 10\ns_lshl_b32 s{sW2k}, s{sW}, 11")
    a(f"s_lshl_b32 s3, s{sR}, 3\ns_add_u32 s3, s3, s{sW}\ns_lshl_b32 s{sOX}, s3, 14")
    a(f"v_xor_b32 v{f0}, v{fS8}, v{fL4}\nv_lshlrev_b32 v{f0}, 4, v{f0}\nv_lshl_add_u32 v{vXa}, v{fL8}, 10, v{f0}")
    a(f"v_xor_b32 v{vXb}, 64, v{vXa}\nv_add_u32 v{vXb}, {8192-1024}, v{vXb}")
    a(f"v_and_b32 v{fCH}, 1, v{fL4}\nv_lshlrev_b32 v{fSW}, 2, v{fCH}\nv_xor_b32 v{fSW}, v{fSW}, v{fS8}\nv_lshlrev_b32 v{fSW}, 4, v{fSW}")
    a(f"s_mul_i32 s{sOKV}, s{sW}, {8*3072}\ns_lshl_b32 s3, s{sC}, 7\ns_add_u32 s{sOKV}, s{sOKV}, s3")
    a(f"v_mul_u32_u24 v{vKV}, 3072, v{fL8}\nv_add_u32 v{vKV}, v{vKV}, v{fSW}")
    srdw(SX, 2048*1024); srdw(SQ, 512*3072); srdw(SGW, 1024)
    a(f"s_and_b32 s{sT}, s{sW}, 3\nv_lshlrev_b32 v{f1}, 2, v0")
    a("s_waitcnt lgkmcnt(0)")
    if debug:
        a(f"v_mov_b32 v{vTS}, 0")
        a(f"s_memrealtime s[{sTS}:{sTS+1}]\ns_waitcnt lgkmcnt(0)\nv_writelane_b32 v{vTS}, s{sTS}, 61")
        ts("start")
    tagD = {}; T = {}
    def dma_p1(q):
        a(f"s_add_u32 m0, s{sW2k}, {(q%4)*2*BLK}")
        a(f"buffer_load_dwordx4 v{vXa}, {srd(SX)}, s{sOX} offen lds")
        a(f"buffer_load_dwordx4 v{vXb}, {srd(SX)}, s{sOX} offen offset:1024 lds")
        a(f"s_add_u32 m0, s{sW1k}, {(8+q%4)*BLK-1024}")
        a(f"s_add_u32 s{sOX}, s{sOX}, 128")
        tagD[q] = a.vm(f"buffer_load_dwordx4 v{vKV}, {srd(SQ)}, s{sOKV} offen offset:1024 lds")
        a(f"s_add_u32 s{sOKV}, s{sOKV}, {64*3072}")
    def dma_p2(i):
        a(f"s_add_u32 m0, s{sW2k}, {(i%4)*2*BLK}")
        a(f"buffer_load_dwordx4 v{vPa}, {srd(SW1)}, s{sOPa} offen lds")
        a(f"s_add_u32 m0, s{sW2k}, {(i%4)*2*BLK+1024}")
        a(f"s_add_u32 s{sOPa}, s{sOPa}, {64*2752}")
        tagD[i] = a.vm(f"buffer_load_dwordx4 v{vPb}, {srd(SPB)}, s{sOPb} offen lds")
        a(f"s_add_u32 s{sOPb}, s{sOPb}, s{sPinc}")
    w3slot = {}; tagW3 = {}
    def dma_w3(b, slot):
        assert b == len(w3slot)
        w3slot[b] = slot
        if b == 22: a(f"s_mov_b32 s{sOW3}, 0")
        a(f"s_add_u32 m0, s{sW1k}, {slot*BLK}")
        tagW3[b] = a.vm(f"buffer_load_dwordx4 v{vW3}, {srd(SW2 if b < 22 else SWO)}, s{sOW3} offen lds")
        a(f"s_add_u32 s{sOW3}, s{sOW3}, {64*1024}")
    dma_p1(0)
    a(f"s_lshl_b32 s3, s{sT}, 8\ns_add_u32 m0, s3, {GWL}")
    tagGW = a.vm(f"buffer_load_dword v{f1}, {srd(SGW)}, s3 offen lds")
    a(f"s_load_dwordx2 s[{SW1}:{SW1+1}], s[0:1], 32\ns_load_dwordx2 s[{SW2}:{SW2+1}], s[0:1], 48\ns_load_dwordx2 s[{SWO}:{SWO+1}], s[0:1], 16\ns_load_dwordx2 s[{SWS}:{SWS+1}], s[0:1], 88")
    a(f"s_load_dwordx2 s[{SOUT}:{SOUT+1}], s[0:1], 72\ns_load_dwordx2 s[{SB1}:{SB1+1}], s[0:1], 40\ns_load_dwordx2 s[{SB2}:{SB2+1}], s[0:1], 56")
    def pf(which):
        if not P["pf"] or not which: return
        lend = a.newlabel("L_pfe")
        def x_():
            a(f"s_lshr_b32 s{sT2}, s2, 3\ns_and_b32 s3, s2, 7\ns_lshl_b32 s3, s3, 5\ns_add_u32 s3, s3, s{sT2}\ns_lshl_b32 s3, s3, 13\nv_lshlrev_b32 v{f0}, 7, v0")
            a(f"buffer_load_dword v31, v{f0}, {srd(SX)}, s3 offen", count=False)
        def up():
            a(f"s_lshr_b32 s{sT2}, s2, 3\ns_bfe_u32 s{sT3}, s2, 0x20001\ns_lshl_b32 s{sT3}, s{sT3}, 5\ns_add_u32 s{sT3}, s{sT3}, s{sT2}\ns_and_b32 s{sT2}, s2, 1")
            a(f"s_lshl_b32 s3, s{sT3}, 2\nv_add_u32 v{f0}, s3, v{fL4}")
        def q_():
            up()
            a(f"v_mul_u32_u24 v{f0}, 3072, v{f0}")
            a(f"s_lshl_b32 s3, s{sT2}, 10\ns_add_u32 s3, s3, 1024\nv_lshl_add_u32 v{f1}, v{fS8}, 7, s3")
            a(f"s_lshl_b32 s3, s{sT2}, 9\nv_and_b32 v{f2}, 3, v0\nv_lshl_add_u32 v{f2}, v{f2}, 7, s3\nv_and_b32 v{f3}, 8, v0\nv_cmp_eq_u32 vcc, 0, v{f3}\nv_cndmask_b32 v{f1}, v{f2}, v{f1}, vcc\nv_add_u32 v{f0}, v{f0}, v{f1}")
            a(f"buffer_load_dword v31, v{f0}, {srd(SQ)}, 0 offen", count=False)
        def w1_():
            up()
            a(f"v_mul_u32_u24 v{f0}, 2752, v{f0}")
            a(f"v_and_b32 v{f1}, 15, v0\nv_lshlrev_b32 v{f1}, 7, v{f1}\nv_min_u32 v{f1}, 1532, v{f1}\ns_mul_i32 s3, s{sT2}, 1536\nv_add_u32 v{f1}, s3, v{f1}\nv_min_u32 v{f1}, 2748, v{f1}\nv_add_u32 v{f0}, v{f0}, v{f1}")
            a(f"buffer_load_dword v31, v{f0}, {srd(SW1)}, 0 offen", count=False)
        def w2_():
            a(f"s_mul_i32 s3, s2, {43*128}\nv_min_u32 v{f0}, 42, v0\nv_lshlrev_b32 v{f0}, 7, v{f0}")
            a(f"buffer_load_dword v31, v{f0}, {srd(SW2)}, s3 offen", count=False)
        def wo_():
            a(f"s_lshl_b32 s3, s2, 11\nv_and_b32 v{f0}, 15, v0\nv_lshlrev_b32 v{f0}, 7, v{f0}")
            a(f"buffer_load_dword v31, v{f0}, {srd(SWO)}, s3 offen", count=False)
        F = dict(x=x_, q=q_, w1=w1_, w2=w2_, wo=wo_)
        a.atomic(True)
        for n, k in enumerate(which):
            ln = a.newlabel("L_pf")
            a(f"s_cmp_lg_u32 s{sW}, {n}\ns_cbranch_scc1 {ln}")
            F[k]()
            a(f"s_branch {lend}")
            a.label(ln)
        a.label(lend)
        a("s_nop 0")
        a.atomic(False)
    def pfat(pos): return [k for k in ("x","q","w1","w2","wo") if P["pfpos"][k] == pos]
    a("s_barrier")
    if pfat(-2): pf(pfat(-2)); a("s_barrier")
    dma_p1(1)
    ts("d1 issued")
    srdw(SW1, 512*2752); srdw(SW2, 1376*1024); srdw(SWO, 512*1024); srdw(SWS, WS_SIZE)
    a("s_waitcnt lgkmcnt(0)\ns_barrier")
    pf(pfat(-1))
    a(f"s_lshr_b32 s{sS}, s{sW}, 2\ns_lshl_b32 s{sX}, s{sS}, 1\ns_xor_b32 s{sX}, s{sX}, s{sT}")
    a(f"v_lshrrev_b32 v{fH}, 5, v0\nv_bfe_u32 v{fR4}, v0, 2, 2\nv_and_b32 v{fC8}, 3, v0\nv_lshlrev_b32 v{fC8}, 3, v{fC8}\nv_and_b32 v{fTok}, 31, v0\nv_lshl_add_u32 v{fHR}, v{fH}, 3, v{fR4}")
    a(f"s_lshl_b32 s3, s{sT}, 5\nv_add_lshl_u32 v{f0}, v{fTok}, s3, 7\nv_bfe_u32 v{f1}, v{fTok}, 1, 3\ns_lshl_b32 s3, s{sX}, 1\nv_xor_b32 v{f1}, v{f1}, v{fH}\nv_xor_b32 v{f1}, s3, v{f1}")
    a(f"v_lshl_add_u32 v{vAX}, v{f1}, 4, v{f0}")
    for j in range(1, 4): a(f"v_xor_b32 v{vAX+j}, {32*j}, v{vAX}")
    a(f"v_lshrrev_b32 v{f1}, 1, v{fR4}\nv_xor_b32 v{f1}, s{sS}, v{f1}\nv_lshl_add_u32 v{f2}, v{fCH}, 5, v{fC8}\nv_lshl_add_u32 v{f1}, v{f1}, 6, v{f2}")
    a(f"s_lshl_b32 s3, s{sX}, 11\ns_add_u32 s3, s3, {8*BLK}\nv_lshl_add_u32 v{f1}, v{fHR}, 7, v{f1}\nv_add_u32 v{vAW}, s3, v{f1}")
    for j in range(1, 4): a(f"v_xor_b32 v{vAW+j}, {j*2048}, v{vAW}")
    a(f"s_lshl_b32 s3, s{sX}, 5\ns_add_u32 s3, s3, {GWL}\nv_lshl_add_u32 v{vAG}, v{fH}, 4, s3\nv_xor_b32 v{vAG+1}, 32, v{vAG}")
    a(f"buffer_load_dword v{vZ}, off, {srd(SWS)}, 0 sc1")
    dma_p1(2)
    ts("d2 issued")

    def su_a():
        a(f"s_mov_b32 s{sONE}, 0x3f803f80\ns_lshr_b32 s{sKq}, s{sW}, 1\nv_lshlrev_b32 v{vL16}, 4, v0")
        for e in range(3): a(f"v_mov_b64 {vr(vS+2*e,2)}, 0")
        a(f"v_mov_b64 {vr(vCS,2)}, 0")
        srdw(SOUT, 2048*1024); srdw(SB1, 2752); srdw(SB2, 1024)
        a(f"s_bitcmp1_b32 s{sW}, 0")
        a(f"s_cselect_b64 s[{SPB}:{SPB+1}], s[{SQ}:{SQ+1}], s[{SW1}:{SW1+1}]")
        a(f"s_cselect_b32 s{SPB+2}, s{SQ+2}, s{SW1+2}\ns_mov_b32 s{SPB+3}, 0x00020000")
        a(f"s_mov_b32 s{sT2}, 3072\ns_mov_b32 s{sT3}, 2752\ns_cselect_b32 s{sPinc}, s{sT2}, s{sT3}")
        a(f"s_cselect_b32 s{sT2}, 64, 192\ns_mul_i32 s{sT2}, s{sT2}, s{sC}\ns_mul_i32 s{sOPb}, s{sPinc}, s{sKq}\ns_lshl_b32 s{sOPb}, s{sOPb}, 4\ns_add_u32 s{sOPb}, s{sOPb}, s{sT2}\ns_lshl_b32 s{sPinc}, s{sPinc}, 6")
        a(f"s_mul_i32 s{sOPa}, s{sKq}, {16*2752}\ns_mul_i32 s3, s{sC}, 192\ns_add_u32 s{sOPa}, s{sOPa}, s3")
    def su_b():
        def w1off(dst, i):
            a(f"v_mul_u32_u24 v{f1}, 171, v{i}\nv_lshrrev_b32 v{f1}, 11, v{f1}")
            a(f"v_mul_u32_u24 v{f2}, {2752-192}, v{f1}\nv_lshl_add_u32 v{dst}, v{i}, 4, v{f2}")
        a(f"s_and_b32 s3, s{sW}, 1\ns_lshl_b32 s3, s3, 7\nv_add_u32 v{f0}, s3, v0")
        w1off(vPa, f0)
        a(f"v_add_u32 v{f0}, 64, v0")
        w1off(vPb, f0)
        a(f"v_lshrrev_b32 v{f0}, 2, v0\nv_mul_u32_u24 v{f0}, 3072, v{f0}\nv_lshl_add_u32 v{f0}, v{fC8}, 1, v{f0}")
        a(f"s_bitcmp1_b32 s{sW}, 0\ns_cselect_b64 vcc, -1, 0\nv_cndmask_b32 v{vPb}, v{vPb}, v{f0}, vcc")
        a(f"s_and_b32 s3, s{sC}, 7\ns_lshl_b32 s3, s3, 7\ns_lshl_b32 s{sT2}, s{sW}, 13\ns_add_u32 s3, s3, s{sT2}\nv_lshl_add_u32 v{vW3}, v{fL8}, 10, v{fSW}\nv_add_u32 v{vW3}, s3, v{vW3}\ns_mov_b32 s{sOW3}, 0")
    def su_c():
        a(f"s_lshl_b32 s{sT2}, s{sX}, 12\ns_lshl_b32 s{sT3}, s{sS}, 5")
        a(f"v_mul_u32_u24 v{f0}, 192, v{fHR}\nv_add3_u32 v{f0}, v{f0}, v{fC8}, s{sT2}")
        a(f"s_lshl_b32 s3, s{sS}, 6\ns_add_u32 s3, s3, 64\nv_lshl_add_u32 v{f1}, v{fCH}, 5, s3\nv_add_u32 v{vA+8}, v{f0}, v{f1}")
        a(f"s_add_u32 s3, s{sT2}, s{sT3}\ns_add_u32 s3, s3, 3072\nv_lshl_add_u32 v{f1}, v{fHR}, 6, v{fC8}\nv_add_u32 v{f1}, s3, v{f1}")
        a(f"s_sub_u32 s3, 32, s{sT3}\nv_add_u32 v{f2}, s3, v{f0}\nv_cmp_eq_u32 vcc, 1, v{fCH}")
        a(f"v_lshl_add_u32 v{f3}, v{fCH}, 9, 0\nv_cndmask_b32 v{vA}, v{f1}, v{f2}, vcc\nv_add_u32 v{f3}, 256, v{f3}\nv_add_u32 v{vA+4}, v{vA}, v{f3}")
        for k in range(3):
            for j in range(1, 4): a(f"v_xor_b32 v{vA+4*k+j}, {j*4096}, v{vA+4*k}")
    def su_d():
        a(f"v_mov_b32 v{f3}, 0x40000000")
        a(f"s_mul_i32 s3, s{sC}, 6\ns_sub_u32 s3, s3, s{sS}\ns_lshl_b32 s3, s3, 5")
        a(f"v_lshl_add_u32 v{f0}, v{fTok}, 1, s3\nv_cmp_eq_u32 vcc, 1, v{fL4}\nv_cndmask_b32 v{f0}, v{f3}, v{f0}, vcc")
        a(f"buffer_load_ushort v{vB1a}, v{f0}, {srd(SB1)}, 0 offen")
        a(f"s_mul_i32 s3, s{sC}, 3\ns_add_u32 s3, s3, s{sS}\ns_add_u32 s3, s3, 1\ns_lshl_b32 s3, s3, 6")
        a(f"v_lshl_add_u32 v{f1}, v{fTok}, 1, s3\nv_lshl_add_u32 v{f1}, v{fH}, 25, v{f1}")
        T["b1"] = a.vm(f"buffer_load_ushort v{vB1b}, v{f1}, {srd(SB1)}, 0 offen")
    def su_e():
        a(f"s_lshl_b32 s{sT2}, s{sR}, 2\ns_add_u32 s{sT2}, s{sT2}, s{sT}")
        a(f"s_lshl_b32 s{sAct}, s{sC}, 1\ns_add_u32 s{sAct}, s{sAct}, s{sS}")
        a(f"s_lshl_b32 s{sT3}, s{sAct}, 17\ns_add_u32 s{sKVo0}, s{sT3}, {KBUF}")
        a(f"s_cmp_lt_u32 s{sC}, 8\ns_cselect_b32 s{sT3}, 10, 11\ns_cselect_b32 s3, 16, 10\ns_lshl_b32 s{sT3}, s{sT2}, s{sT3}\ns_add_u32 s{sKVo0}, s{sKVo0}, s{sT3}")
        a(f"s_lshl_b32 s3, 1, s3\ns_add_u32 s{sKVo1}, s{sKVo0}, s3")
        a(f"s_lshl_b32 s{sFl}, s{sAct}, 4\ns_add_u32 s{sFl}, s{sFl}, s{sR}\ns_lshl_b32 s{sFl}, s{sFl}, 7\ns_lshl_b32 s{sT3}, s{sT}, 3\ns_add_u32 s{sFl}, s{sFl}, s{sT3}\ns_add_u32 s{sFl}, s{sFl}, {FL_KV}")
        a(f"s_lshl_b32 s{sHL}, s{sT2}, 3\ns_lshr_b32 s{sT3}, s{sC}, 1\ns_add_u32 s{sHL}, s{sHL}, s{sT3}\ns_lshl_b32 s{sHL}, s{sHL}, 7\ns_and_b32 s{sT3}, s{sAct}, 3\ns_lshl_b32 s{sT3}, s{sT3}, 3\ns_add_u32 s{sHL}, s{sHL}, s{sT3}\ns_add_u32 s{sHL}, s{sHL}, {FL_H}")
        a(f"s_sub_i32 s{sI0}, 8, s{sT2}\ns_max_i32 s{sI0}, s{sI0}, 0")
        a(f"s_lshl_b32 s{sT3}, s{sT2}, 17\ns_add_u32 s{sT3}, s{sT3}, {ACT}")
        a(f"s_lshl_b32 s3, s{sAct}, 10\ns_add_u32 s{sOo}, s{sT3}, s3\ns_add_u32 s{sOo}, s{sOo}, {96*1024}")
        a(f"s_mul_i32 s3, s{sC}, {6*1024}\ns_add_u32 s{sHo}, s{sT3}, s3")
    def su_f():
        a(f"s_mov_b32 s{sSpin}, 0x40000")
        a(f"s_lshr_b32 s3, s{sC}, 3\ns_lshl_b32 s3, s3, 1\ns_and_b32 s{sTT3}, s{sW}, 1\ns_add_u32 s{sTT3}, s{sTT3}, s3")
        a(f"s_lshl_b32 s3, s{sR}, 2\ns_add_u32 s3, s3, s{sTT3}\ns_lshl_b32 s3, s3, 17\ns_add_u32 s{sAct}, s3, {ACT}\ns_lshl_b32 s3, s{sKq}, 10\ns_add_u32 s{sAct}, s{sAct}, s3")
    def masks(lo, hi):
        for i in range(lo, hi):
            m = 0
            for l in range(64):
                if 8*(i//4) + 4*(l//32) + i % 4 <= l % 32: m |= 1 << l
            a(f"s_mov_b32 s{16+2*i}, 0x{m & 0xffffffff:08x}\ns_mov_b32 s{17+2*i}, 0x{m >> 32:08x}")
    su_a()

    def flag_store(soff, tmp):
        a(f"v_mov_b64 {vr(tmp,2)}, s[{sN}:{sN+1}]")
        return lane0(f"buffer_store_dwordx2 {vr(tmp,2)}, off, {srd(SWS)}, s{soff} sc1")
    def poll_issue(voff, vtmp):
        return a.vm(f"buffer_load_dwordx2 {vr(vtmp,2)}, v{voff}, {srd(SWS)}, 0 offen sc1")
    def poll_check(tag, voff, vtmp):
        a.wait(vm=tag)
        a(f"v_cmp_ne_u64 vcc, s[{sN}:{sN+1}], {vr(vtmp,2)}")
        def slow():
            lp, dn = a.newlabel("L_poll"), a.newlabel("L_polld")
            a.label(lp)
            a(f"buffer_load_dwordx2 {vr(vtmp,2)}, v{voff}, {srd(SWS)}, 0 offen sc1")
            a(f"s_waitcnt vmcnt(0)\nv_cmp_ne_u64 vcc, s[{sN}:{sN+1}], {vr(vtmp,2)}\ns_cbranch_vccz {dn}")
            a(f"s_sleep 2\ns_sub_u32 s{sSpin}, s{sSpin}, 1\ns_cbranch_scc0 {lp}")
            a(f"s_mov_b32 s{sSpin}, 0")
            a.label(dn)
        rare("s_cbranch_vccnz", slow, 0, 0)

    def reads(i):
        buf = WB + 32*(i % 2)
        if i < 8:
            for j in range(4):
                a(f"ds_read_b128 {vr(XR+16*i+4*j,4)}, v{vAX+j} offset:{(i%4)*2*BLK}")
                a(f"ds_read_b64_tr_b16 {vr(buf+4*j,2)}, v{vAW+j} offset:{(i%4)*BLK}")
                a(f"ds_read_b64_tr_b16 {vr(buf+4*j+2,2)}, v{vAW+j} offset:{(i%4)*BLK+512}")
            for j in range(2): a(f"ds_read_b128 {vr(buf+16+4*j,4)}, v{vAG+j} offset:{i*128}")
        elif i < 16:
            base = (i % 4)*2*BLK
            for j in range(4):
                a(f"ds_read_b64_tr_b16 {vr(buf+8*j,2)}, v{vA+j} offset:{base}")
                a(f"ds_read_b64_tr_b16 {vr(buf+8*j+2,2)}, v{vA+4+j} offset:{base}")
                a(f"ds_read_b64_tr_b16 {vr(buf+8*j+4,2)}, v{vA+8+j} offset:{base}")
                t_ = a(f"ds_read_b64_tr_b16 {vr(buf+8*j+6,2)}, v{vA+8+j} offset:{base+768}")
                if j == 0: T["r0"] = t_
    def stats(q):
        buf = WB + 32*(q % 2); L = []
        if P["strip"] & 2: return L
        for e in range(8):
            x = XR+16*q+e; p = e % 2
            L.append(f"v_dot2c_f32_bf16 v{vS+p}, s{sONE}, v{x}")
            L.append(f"v_dot2c_f32_bf16 v{vS+2+p}, v{x}, v{x}")
            L.append(f"v_dot2c_f32_bf16 v{vS+4+p}, v{buf+16+e}, v{x}")
        return L
    def colsum(i, tmp):
        buf = WB + 32*(i % 2)
        if P["strip"] & 2: return
        for e in range(4):
            a(f"v_lshlrev_b32 v{tmp}, 16, v{buf+e}\nv_lshlrev_b32 v{tmp+1}, 16, v{buf+4+e}")
            a(f"v_and_b32 v{tmp+2}, s{sHM}, v{buf+e}\nv_and_b32 v{tmp+3}, s{sHM}, v{buf+4+e}")
            a(f"v_add_f32 v{vCS}, v{vCS}, v{tmp}\nv_add_f32 v{vCS+1}, v{vCS+1}, v{tmp+1}")
            a(f"v_add_f32 v{vCS}, v{vCS}, v{tmp+2}\nv_add_f32 v{vCS+1}, v{vCS+1}, v{tmp+3}")
    def p1_mfmas(q, isv):
        buf = WB + 32*(q % 2); L = []
        if P["strip"] & 8: return L
        for j in range(4):
            cin = "0" if (q == 0 and j == 0) else vr(ACC0,16)
            w, x = vr(buf+4*j,4), vr(XR+16*q+4*j,4)
            L.append(f"v_mfma_f32_32x32x16_bf16 {vr(ACC0,16)}, {x if isv else w}, {w if isv else x}, {cin}")
        return L
    def p2_mfmas(i):
        q = i - 8; buf = WB + 32*(i % 2); L = []
        if P["strip"] & 8: return L
        for j in range(4):
            first = (q == 0 and j == 0)
            L.append(f"v_mfma_f32_32x32x16_bf16 {vr(ACC1,16)}, {vr(buf+8*j,4)}, {vr(XR+16*q+4*j,4)}, {'0' if first else vr(ACC1,16)}")
            L.append(f"v_mfma_f32_32x32x16_bf16 {vr(ACC2,16)}, {vr(buf+8*j+4,4)}, {vr(XR+16*q+4*j,4)}, {'0' if first else vr(ACC2,16)}")
        return L
    def kv_setup():
        a(f"s_lshl_b32 s3, s{sC}, 17\ns_add_u32 s{sT2}, s3, {KBUF}\ns_lshl_b32 s{sT3}, s{sKq}, 16\ns_add_u32 s{sT2}, s{sT2}, s{sT3}")
        a(f"s_add_u32 s3, s3, {VBUF}\ns_cmp_lt_u32 s{sW}, 4\ns_cselect_b32 s{sKi0}, s{sT2}, s3")
        a(f"s_and_b32 s3, s{sW}, 1\ns_cselect_b32 s3, 6, 0\ns_lshl_b32 s{sT2}, s{sR}, 2\ns_add_u32 s3, s3, s{sT2}\ns_sub_u32 s3, s3, 8")
        a(f"s_mul_i32 s{sT3}, s{sT}, 6\ns_lshl_b32 s{sT2}, s{sR}, 3\ns_add_u32 s{sT3}, s{sT3}, s{sT2}\ns_sub_u32 s{sT3}, s{sT3}, 16")
        a(f"s_cmp_lt_u32 s{sW}, 4\ns_cselect_b32 s{sKi1}, s3, s{sT3}")
        a(f"s_lshl_b32 s3, s{sKi1}, 10\ns_add_u32 s{sKi0}, s{sKi0}, s3\ns_mul_i32 s{sKi2}, s{sW}, 6144")
    def kv_pair(e):
        a(f"s_add_u32 s{sKt}, s{sKi0}, {e*1024}\ns_cmp_lt_i32 s{sKi1}, {-e}\ns_cselect_b32 s{sKt}, 0x40000000, s{sKt}")
        a(f"s_add_u32 m0, s{sKi2}, {KL + e*1024}")
        a(f"buffer_load_dwordx4 v{vL16}, {srd(SWS)}, s{sKt} offen sc1 lds")
        return a.vm(f"buffer_load_dwordx4 v{vL16}, {srd(SWS)}, s{sKt} offen offset:1024 sc1 lds")

    PM = 128; VF = 136; vAK, vAV, vFl, vB2a, vB2b = 152, 153, 154, 155, 156
    vM, vPo, vA3 = 16, 18, 20
    PP = 160; HF = 168
    SA, SB, S0, KF, vQ, ZB, OA = 32, 48, 64, 80, 92, 96, 112
    PF = SA
    def at_setup1():
        a(f"v_mov_b32 v{PP}, 0xffff")
        for e in range(8):
            a(f"v_cndmask_b32 v{PM+e}, 0, v{PP}, s[{16+4*e}:{17+4*e}]\nv_cndmask_b32 v{PM+e}, v{PM+e}, -1, s[{18+4*e}:{19+4*e}]")
    def at_setup2a():
        for e in range(13): a(f"v_mov_b32 v{VF+e}, s{sONE}")
    def at_setup2():
        for e in range(13, 16): a(f"v_mov_b32 v{VF+e}, s{sONE}")
        a(f"s_mul_i32 s3, s{sS}, 12288\ns_lshl_b32 s{sT2}, s{sT}, 10\ns_add_u32 s3, s3, s{sT2}\ns_add_u32 s3, s3, {KL}\nv_add_u32 v{vAK}, s3, v{vL16}")
        a(f"s_lshl_b32 s3, s{sT}, 11\ns_lshl_b32 s{sT2}, s{sS}, 8\ns_add_u32 s3, s3, s{sT2}\ns_add_u32 s3, s3, {VL}\nv_and_b32 v{vAV}, 0x2f0, v{vL16}\nv_add_u32 v{vAV}, s3, v{vAV}")
    def at_setup3():
        a(f"s_lshl_b32 s3, s{sR}, 2\ns_add_u32 s3, s3, s{sTT3}\ns_lshl_b32 s3, s3, 10\ns_add_u32 s3, s3, {FL_H}\nv_bfe_u32 v{vFl}, v0, 2, 3\nv_lshl_add_u32 v{vFl}, v{vFl}, 7, s3\nv_and_b32 v{PP}, 3, v0\nv_lshl_add_u32 v{vFl}, v{PP}, 3, v{vFl}")
        a(f"s_and_b32 s3, s{sC}, 7\ns_lshl_b32 s3, s3, 7\ns_cmp_eq_u32 s{sKq}, 0\ns_cselect_b32 s3, s3, 0x40000000")
        a(f"v_lshlrev_b32 v{PP}, 1, v0\nv_lshlrev_b32 v{PP+1}, 20, v0\nv_and_b32 v{PP+1}, 0x2000000, v{PP+1}\nv_add3_u32 v{PP}, v{PP}, v{PP+1}, s3")
        a(f"buffer_load_ushort v{vB2a}, v{PP}, {srd(SB2)}, 0 offen")
        T["b2"] = a.vm(f"buffer_load_ushort v{vB2b}, v{PP}, {srd(SB2)}, 0 offen offset:64")
        a(f"s_mov_b32 s{sEX}, 0x0000ffff\ns_mov_b32 s{sEX+1}, 0x0000ffff")
    def hilo(dst, x, t0):
        a(f"v_cvt_pk_bf16_f32 v{t0}, v{x}, v{x}\nv_and_b32 v{t0}, 0xffff0000, v{t0}\nv_sub_f32 v{t0+1}, v{x}, v{t0}\nv_cvt_pk_bf16_f32 v{dst}, v{t0}, v{t0+1}")

    BA = WB + 16; AU = WB + 8
    def stage(i, isv):
        ts(f"st{i} pre", fine=True)
        if i < 16:
            t = [tagD[i]]
            if i == 0: t.append(tagGW)
            a.wait(vm=t)
        ts(f"st{i} vm", fine=True)
        a("s_barrier")
        if i in (0, 8, 16): ts(f"st{i} go")
        def fill():
            pf(pfat(i))
            if i == 9: T["st"] = a.ds(f"ds_read_b128 {vr(vT,4)}, v{vT}")
            if i == 16:
                for e in range(4): T["cs"] = a.ds(f"ds_read_b64 {vr(WB+2*e,2)}, v{vT} offset:{e*512}")
            if i == 2:
                a(f"v_readfirstlane_b32 s{sN}, v{vZ}\ns_add_u32 s{sN}, s{sN}, 1\ns_xor_b32 s{sN+1}, s{sN}, 0x5bd1e995")
            if i == 5: a(f"s_mov_b32 s{sHM}, 0xffff0000")
            if i == 0: su_b()
            if i == 1: su_c()
            if i == 3: su_d()
            if i == 4: su_e()
            if i == 6: su_f(); masks(0, 6)
            if i == 7: masks(6, 16)
            if i == 9:
                a.wait(lg=T["st"])
                s1, s2, sg = vT, vT+1, vT+2
                a(f"v_add_f32 v{s1}, v{vS}, v{s1}\nv_add_f32 v{s2}, v{vS+1}, v{s2}\nv_add_f32 v{sg}, v{vS+2}, v{sg}")
                m, sd = vMS, vMS+1
                a(f"v_mul_f32 v{m}, {hx(-1.0/512)}, v{s1}\nv_mul_f32 v{s2}, {hx(1.0/512)}, v{s2}")
                a(f"v_fma_f32 v{s2}, -v{m}, v{m}, v{s2}\nv_max_f32 v{s2}, 0, v{s2}\nv_add_f32 v{s2}, {hx(1e-5)}, v{s2}")
                a(f"v_sqrt_f32 v{sd}, v{s2}\nv_rsq_f32 v{s1}, v{s2}\nv_mul_f32 v{sg}, {hx(LOG2E)}, v{sg}")
            if i == 10:
                s1, s2, sg = vT, vT+1, vT+2; rs = s1; sd = vMS+1
                a(f"v_exp_f32 v{s2}, -v{sg}\nv_exp_f32 v{sg}, v{sg}")
                K0 = -2*0.7978845608028654*LOG2E; K1 = K0*0.044715
                a(f"v_mul_f32 v{vA01}, {hx(K0)}, v{rs}\nv_mul_f32 v{vA01+1}, v{rs}, v{rs}")
                a(f"v_mul_f32 v{vA01+1}, v{vA01+1}, v{rs}\nv_mul_f32 v{vA01+1}, {hx(K1)}, v{vA01+1}")
                a(f"v_add_f32 v{s2}, 1.0, v{s2}\nv_min_f32 v{sg}, {hx(1e30)}, v{sg}\nv_add_f32 v{sg}, 1.0, v{sg}")
                a(f"v_rcp_f32 v{vIG+1}, v{s2}\nv_mul_f32 v{vIG}, v{sd}, v{sg}\nv_rcp_f32 v{sg}, v{sg}")
                a(f"v_lshrrev_b32 v{s1}, 2, v{vL16}\nv_and_b32 v{s1}, 0x7c, v{s1}\ns_lshl_b32 s3, s{sT}, 7\ns_add_u32 s3, s3, {OMGL}\nv_add_u32 v{s1}, s3, v{s1}")
                a(f"ds_write_b32 v{s1}, v{sg}")
            if i == 11:
                a(f"v_bfe_u32 v{vT}, v0, 2, 2\nv_min_u32 v{vT}, 2, v{vT}\nv_sub_u32 v{vT}, s{sR}, v{vT}\nv_max_i32 v{vT}, 0, v{vT}")
                a(f"v_and_b32 v{vT+1}, 16, v0\nv_lshlrev_b32 v{vT+1}, 4, v{vT+1}\ns_lshl_b32 s3, s{sC}, 4\ns_add_u32 s3, s3, {FL_KV//128}\nv_add3_u32 v{vT}, v{vT}, v{vT+1}, s3\nv_lshlrev_b32 v{vT}, 7, v{vT}")
                a(f"v_and_b32 v{vT+1}, 3, v0\nv_lshl_add_u32 v{vT}, v{vT+1}, 3, v{vT}")
            if i == 12: at_setup1()
            if i == P["kvpoll"]: T["kvp"] = poll_issue(vT, vT+2)
            if i == 13: kv_setup(); at_setup2a()
            if i == 14: at_setup2(); at_setup3()
            if i == P["kvpub"]:
                if not (P["strip"] & 16): a.wait(vm=T["kv"])
                flag_store(sFl, vT); ts("kv published")
            if 8 <= i < 16 and not (P["strip"] & 1):
                a.wait(lg=T["r0"]); colsum(i, 88 if i == 8 else XR+16*(i-9))
            if i == P["kvchk"] and not (P["strip"] & 16): poll_check(T["kvp"], vT, vT+2)
            if i == 15:
                a(f"s_lshl_b32 s3, s{sW}, 9\ns_add_u32 s3, s3, {CSL}\nv_lshrrev_b32 v{vT+1}, 1, v{vL16}\nv_add_u32 v{vT}, s3, v{vT+1}")
                a(f"ds_write_b64 v{vT}, {vr(vCS,2)}")
                a(f"s_lshl_b32 s3, s{sS}, 11\ns_add_u32 s3, s3, {CSL}\nv_add_u32 v{vT}, s3, v{vT+1}")
            if i == 16:
                hilo(BA, vMS, vT); hilo(BA+2, vMS+1, vT+2)
                a(f"v_mov_b32 v{BA+1}, v{BA}\nv_mov_b32 v{BA+3}, 0")
                a.wait(lg=T["cs"], vm=T["b1"])
                for e in range(2): a(f"v_add_f32 v{WB+e}, v{WB+e}, v{WB+2+e}\nv_add_f32 v{WB+4+e}, v{WB+4+e}, v{WB+6+e}")
                for e in range(2): a(f"v_add_f32 v{WB+e}, v{WB+e}, v{WB+4+e}")
                a(f"s_mov_b32 vcc_lo, 0xffff0000\ns_mov_b32 vcc_hi, 0xffff0000\nv_cndmask_b32 v{WB}, 0, v{WB}, vcc")
                for e, (cs, b1) in enumerate(((WB, vB1a), (WB+1, vB1b))):
                    d = AU + 4*e
                    a(f"v_cvt_pk_bf16_f32 v{d}, v{cs}, v{cs}\nv_and_b32 v{d+3}, 0xffff0000, v{d}\nv_sub_f32 v{d+3}, v{cs}, v{d+3}\nv_cvt_pk_bf16_f32 v{d+1}, v{d+3}, v{d+3}")
                    a(f"v_lshl_or_b32 v{d+2}, v{b1}, 16, v{b1}\nv_mov_b32 v{d+3}, 0")
        def dmas():
            if i + 3 < 8: dma_p1(i+3)
            elif i + 3 < 16: dma_p2(i+3)
            if i == 13: dma_w3(0, 18); dma_w3(1, 8); dma_w3(2, 9)
            if i == P["kvchk"] + 1:
                for e in (0, 2): T["kvin"] = kv_pair(e)
            if i == P["kvchk"] + 2:
                T["kvin"] = kv_pair(4); dma_w3(3, 10)
            if i == 16: dma_w3(4, 11); dma_w3(5, 0); dma_w3(6, 1)
        R = a.cap(lambda: reads(i)); F = a.cap(fill); D = a.cap(dmas)
        if P["strip"] & 1: R = []
        if P["strip"] & 4: D = [x for x in D if not (isinstance(x, Ins) and x.kind == "vmem" and x not in tagD.values() and x not in tagW3.values() and x is not T.get("kvin"))]
        if i == 0: a.mix([(R, 0, 1), (D, 0, 1), (F, 0, 1)], gaps=1)
        elif i <= 8:
            a.mix([(p1_mfmas(i-1, isv), 0, 1), (R, 0, 1), (D, 0, 1), (F, 0.25 if i == 8 else 0, 1)], gaps=4)
            st = stats(i-1)
            if i == 8:
                KP = WB + 32
                for x in st[:6]: a(x)
                for e in range(8): a(f"v_cvt_pk_bf16_f32 v{KP+e}, v{ACC0+2*e}, v{ACC0+2*e+1}")
                a(f"buffer_store_dwordx4 {vr(KP,4)}, v{vL16}, {srd(SWS)}, s{sKVo0} offen sc1")
                T["kv"] = a.vm(f"buffer_store_dwordx4 {vr(KP+4,4)}, v{vL16}, {srd(SWS)}, s{sKVo1} offen sc1")
                st = st[6:]
            for x in st: a(x)
        else:
            a.mix([(p2_mfmas(i-1), 0, 1), (R, 0, 0.75), (D, 0, 0.75), (F, 0.25 if i == 15 else 0.125, 0.875)], gaps=8)
        if i == 8:
            a(f"v_add_f32 v{vS}, v{vS}, v{vS+1}\nv_add_f32 v{vS+1}, v{vS+2}, v{vS+3}\nv_add_f32 v{vS+2}, v{vS+4}, v{vS+5}")
            a(f"v_and_b32 v{vT}, 0x1f0, v{vL16}\ns_lshl_b32 s3, s{sW}, 9\ns_add_u32 s3, s3, {STL}\nv_add_u32 v{vT+1}, s3, v{vT}")
            for e in range(3): a(f"v_mov_b32 v{vS+3+e}, v{vS+e}")
            a(f"s_xor_b32 s3, s{sW}, 4\ns_lshl_b32 s3, s3, 9\ns_add_u32 s3, s3, {STL}\nv_add_u32 v{vT}, s3, v{vT}")
            for e in range(3): a(f"v_permlane32_swap_b32 v{vS+e}, v{vS+3+e}")
            for e in range(3): a(f"v_add_f32 v{vS+e}, v{vS+e}, v{vS+3+e}")
            a(f"ds_write_b128 v{vT+1}, {vr(vS,4)}")
        if i < 16: a("s_waitcnt lgkmcnt(0)")
    stage(0, False)
    a(f"s_cmp_ge_u32 s{sC}, 8\ns_cbranch_scc1 L_p1v")
    k = a.save(); st0 = (nts[0], len(TSN))
    for i in range(1, 9): stage(i, False)
    a("s_branch L_p1j")
    k2 = a.save(); a.restore(k); a.label("L_p1v")
    nts[0] = st0[0]; del TSN[st0[1]:]
    for i in range(1, 9): stage(i, True)
    a.label("L_p1j"); a.merge(k2)
    for i in range(9, 17): stage(i, False)
    a(f"v_mfma_f32_32x32x16_bf16 {vr(ACC2,16)}, {vr(AU+4,4)}, {vr(BA,4)}, {vr(ACC2,16)}")
    a(f"v_mfma_f32_32x32x16_bf16 {vr(ACC1,16)}, {vr(AU,4)}, {vr(BA,4)}, {vr(ACC1,16)}")
    ts("pass2 done")
    w3q = [(7,2),(8,3),(9,4),(10,5),(11,6),(12,7)]
    def w3next():
        if w3q: dma_w3(*w3q.pop(0))
    w3next(); w3next()
    a(f"s_lshl_b32 s{sT2}, s{sS}, 11\ns_add_u32 s{sT2}, s{sHo}, s{sT2}\ns_lshl_b32 s3, s{sS}, 10\ns_sub_u32 s{sT3}, s{sHo}, s3")
    G0 = 168; HP = 192
    src = [ACC2+2*e for e in range(8)] + [ACC1+8+2*e for e in range(4)]
    for gidx in range(3):
        ss = src[4*gidx:4*gidx+4]; tt = [G0+8*gidx+2*e for e in range(4)]
        for s_, t_ in zip(ss, tt): a(f"v_pk_mul_f32 {vr(t_,2)}, {vr(s_,2)}, {vr(s_,2)}")
        for s_, t_ in zip(ss, tt): a(f"v_pk_fma_f32 {vr(t_,2)}, {vr(t_,2)}, {vr(vA01,2)}, {vr(vA01,2)} op_sel:[0,1,0] op_sel_hi:[1,1,0]")
        for s_, t_ in zip(ss, tt): a(f"v_pk_mul_f32 {vr(t_,2)}, {vr(t_,2)}, {vr(s_,2)}")
        w3next()
        for t_ in tt: a(f"v_exp_f32 v{t_}, v{t_}\nv_exp_f32 v{t_+1}, v{t_+1}")
        w3next()
        for t_ in tt: a(f"v_pk_fma_f32 {vr(t_,2)}, {vr(t_,2)}, {vr(vIG,2)}, {vr(vIG,2)} op_sel_hi:[1,0,0]")
        for t_ in tt: a(f"v_rcp_f32 v{t_}, v{t_}\nv_rcp_f32 v{t_+1}, v{t_+1}")
        for s_, t_ in zip(ss, tt): a(f"v_pk_mul_f32 {vr(t_,2)}, {vr(t_,2)}, {vr(s_,2)}")
        for e, t_ in enumerate(tt): a(f"v_cvt_pk_bf16_f32 v{HP+4*gidx+e}, v{t_}, v{t_+1}")
        if gidx < 2: a(f"buffer_store_dwordx4 {vr(HP+4*gidx,4)}, v{vL16}, {srd(SWS)}, s{sT2} offen offset:{1024*(2+gidx)} sc1")
        else: T["h"] = a.vm(f"buffer_store_dwordx4 {vr(HP+8,4)}, v{vL16}, {srd(SWS)}, s{sT3} offen offset:1024 sc1")
    QS = 0.25*LOG2E
    a(f"s_mov_b32 s{sT2}, {hx(QS)}\ns_mov_b32 s{sT3}, {hx(QS)}")
    for e in range(4): a(f"v_pk_mul_f32 {vr(ACC1+2*e,2)}, {vr(ACC1+2*e,2)}, s[{sT2}:{sT3}]")
    for e in range(4): a(f"v_cvt_pk_bf16_f32 v{vQ+e}, v{ACC1+2*e}, v{ACC1+2*e+1}")
    ts("gelu done")
    a.wait(vm=[tagW3[P["w3go"]], T["kvin"], T["b2"]])
    a("s_barrier")
    ts("attn go")
    if P["prio"]: a("s_setprio 3")
    def zup():
        lp, dn = a.newlabel("L_zp"), a.newlabel("L_zd")
        a(f"v_lshrrev_b32 v{HF}, 4, v0\nv_and_b32 v{HF+1}, 15, v0\nv_lshl_add_u32 v{HF}, v{HF}, 5, v{HF+1}\nv_lshlrev_b32 v{HF}, 7, v{HF}\nv_add_u32 v{HF}, {FL_KV}, v{HF}")
        a.label(lp)
        a(f"s_mov_b32 s3, 0")
        for e in range(4):
            a(f"buffer_load_dwordx2 {vr(HF+2+2*e,2)}, v{HF}, {srd(SWS)}, s3 offen sc1\ns_add_u32 s3, s3, {128*128}")
        a("s_waitcnt vmcnt(0)")
        a(f"v_cmp_ne_u64 vcc, s[{sN}:{sN+1}], {vr(HF+2,2)}")
        for e in range(1, 4): a(f"v_cmp_ne_u64 s[{sT2}:{sT3}], s[{sN}:{sN+1}], {vr(HF+2+2*e,2)}\ns_or_b64 vcc, vcc, s[{sT2}:{sT3}]")
        a(f"s_cbranch_scc0 {dn}")
        a(f"s_sleep 4\ns_sub_u32 s{sSpin}, s{sSpin}, 1\ns_cbranch_scc0 {lp}\ns_mov_b32 s{sSpin}, 0")
        a.label(dn)
        a(f"v_mov_b32 v{HF}, s{sN}")
        lane0(f"buffer_store_dword v{HF}, off, {srd(SWS)}, 0 sc1")
    a(f"s_lshl_b32 s3, s2, 3\ns_add_u32 s3, s3, s{sW}\ns_cmp_eq_u32 s3, {57*8}"); rare("s_cbranch_scc1", zup, 0, 1)
    def kread(i, buf=None): return a.ds(f"ds_read_b128 {vr(KF+4*(i%3) if buf is None else buf,4)}, v{vAK} offset:{i*1024}")
    def zfill(val2):
        for e in range(8): a(f"v_mov_b64 {vr(ZB+2*e,2)}, {val2}")
    def zswitch(i, val2):
        a(f"s_cmp_eq_u32 s{sI0}, {i}"); rare("s_cbranch_scc1", lambda: zfill(val2), 7, 1)
    def zinit(val2):
        zfill(val2)
        def ninf():
            a(f"v_mov_b32 v{vT}, 0xff800000\nv_mov_b32 v{vT+1}, 0xff800000"); zfill(vr(vT,2))
        a(f"s_cmp_gt_u32 s{sI0}, 0"); rare("s_cbranch_scc1", ninf, 0, 1)
    def sbuf(i): return S0 if i == 0 else (SA if i % 2 else SB)
    def smfma(i, val2):
        if i > 0: zswitch(i, val2)
        a(f"v_mfma_f32_32x32x16_bf16 {vr(sbuf(i),16)}, {vr(KF+4*(i%3),4)}, {vr(vQ,4)}, {vr(ZB,16)}")
    def merge_s():
        for e in range(16): a(f"v_cndmask_b32 v{SB+e}, v{S0+e}, v{SB+e}, s[{16+2*e}:{17+2*e}]")
    def vread(i, buf):
        a(f"s_mov_b64 exec, s[{sEX}:{sEX+1}]")
        a.ds(f"ds_read_b128 {vr(VF+8*buf,4)}, v{vAV} offset:{i*2048}")
        t_ = a.ds(f"ds_read_b128 {vr(VF+8*buf+4,4)}, v{vAV} offset:{i*2048+1024}")
        a("s_mov_b64 exec, -1")
        return t_
    def passA():
        tk = {i: kread(i) for i in range(3)}
        zinit("0")
        a.wait(lg=tk[0]); smfma(0, "0"); tk[3] = kread(3)
        a.wait(lg=tk[1]); smfma(1, "0"); tk[4] = kread(4)
        for i in range(1, 9):
            if i < 8:
                a.wait(lg=tk[i+1]); smfma(i+1, "0")
                if i + 4 < 9: tk[i+4] = kread(i+4)
            else: merge_s()
            b = sbuf(i)
            for e in range(8):
                if i == 1 and e < 2: a(f"v_max_f32 v{vM+e}, v{b+2*e}, v{b+2*e+1}")
                else: a(f"v_max3_f32 v{vM+e%2}, v{b+2*e}, v{b+2*e+1}, v{vM+e%2}")
        a(f"v_max_f32 v{vM}, v{vM}, v{vM+1}")
        a(f"v_mov_b32 v{vT}, v{vM}\nv_permlane32_swap_b32 v{vM}, v{vT}\nv_max_f32 v{vM}, v{vM}, v{vT}\nv_sub_f32 v{vM}, 0, v{vM}\nv_mov_b32 v{vM+1}, v{vM}")
    def passB(tk, hook):
        m2 = vr(vM, 2)
        zinit(m2)
        a.wait(lg=tk[0]); smfma(0, m2); tk[3] = kread(3)
        a.wait(lg=tk[1]); smfma(1, m2); tk[4] = kread(4)
        tv = {1: vread(1, 1)}
        for i in range(1, 9):
            if i < 8:
                a.wait(lg=tk[i+1]); smfma(i+1, m2)
                if i + 4 < 9: tk[i+4] = kread(i+4)
                tv[i+1] = vread(i+1, (i+1) % 2)
            else:
                tv[0] = vread(0, 1)
                merge_s()
            b = sbuf(i)
            for e in range(16):
                a(f"v_exp_f32 v{b+e}, v{b+e}")
                hook(i, e)
            for e in range(8): a(f"v_cvt_pk_bf16_f32 v{PP+e}, v{b+2*e}, v{b+2*e+1}")
            if i == 8:
                for e in range(8): a(f"v_bfi_b32 v{PF+e}, v{PM+e}, 0, v{PP+e}\nv_and_b32 v{PP+e}, v{PM+e}, v{PP+e}")
            a.wait(lg=tv[i])
            vb = VF + 8*(i % 2)
            a(f"v_mfma_f32_32x32x16_bf16 {vr(OA,16)}, {vr(vb,4)}, {vr(PP,4)}, {'0' if i == 1 else vr(OA,16)}")
            a(f"v_mfma_f32_32x32x16_bf16 {vr(OA,16)}, {vr(vb+4,4)}, {vr(PP+4,4)}, {vr(OA,16)}")
            if i == 8:
                a.wait(lg=tv[0])
                a(f"v_mfma_f32_32x32x16_bf16 {vr(OA,16)}, {vr(VF+8,4)}, {vr(PF,4)}, {vr(OA,16)}")
                a(f"v_mfma_f32_32x32x16_bf16 {vr(OA,16)}, {vr(VF+12,4)}, {vr(PF+4,4)}, {vr(OA,16)}")
    t8 = kread(8, PP)
    tk = {i: kread(i) for i in range(3)}
    a(f"v_mov_b64 {vr(vM,2)}, 0")
    a.wait(lg=t8)
    for e in range(4): a(f"v_dot2c_f32_bf16 v{vM+e%2}, v{PP+e}, v{vQ+e}")
    a(f"v_add_f32 v{vM}, v{vM}, v{vM+1}")
    a(f"v_mov_b32 v{vM+1}, v{vM}\nv_permlane32_swap_b32 v{vM}, v{vM+1}\nv_add_f32 v{vM}, v{vM}, v{vM+1}\nv_sub_f32 v{vM}, 0, v{vM}\nv_mov_b32 v{vM+1}, v{vM}")
    tagA = []
    def aload():
        b = len(tagA)
        if b >= 30: return
        if b == 22: a(f"s_add_u32 s{sAct}, s{sAct}, {(96-88)*1024}")
        tagA.append(a.vm(f"buffer_load_dwordx4 {vr(HF+4*(b%22),4)}, v{vL16}, {srd(SWS)}, s{sAct} offen sc1"))
        a(f"s_add_u32 s{sAct}, s{sAct}, 4096")
    def hook(i, e):
        if P["prio"] and e == 0 and i in (3, 5, 7): a(f"s_setprio {3 - (i-1)//2}")
        if i == P["hpub"] and e == 15:
            a.wait(vm=T["h"]); flag_store(sHL, vT); ts("h published")
        if i == P["hpoll"] and e == 8: T["hp"] = poll_issue(vFl, vPo)
        if i == P["hchk"] and e == 0:
            poll_check(T["hp"], vFl, vPo); ts("h flags ok")
        if i >= P["hchk"] and e % 4 == 1: aload()
    passB(tk, hook)
    assert not w3q
    A3 = 32; W3F = 64; NB = 5; INIT = 136
    a(f"v_lshrrev_b32 v{vT}, 5, v0\nv_bfe_u32 v{vT+1}, v0, 2, 2\nv_lshl_add_u32 v{vT}, v{vT}, 2, v{vT+1}\nv_lshlrev_b32 v{vT}, 7, v{vT}")
    a(f"v_lshrrev_b32 v{vT+1}, 1, v{vT+1}\nv_lshl_add_u32 v{vT}, v{vT+1}, 6, v{vT}\nv_bfe_u32 v{vT+1}, v0, 4, 1\nv_lshl_add_u32 v{vT}, v{vT+1}, 5, v{vT}")
    a(f"v_and_b32 v{vT+1}, 3, v0\nv_lshl_add_u32 v{vT}, v{vT+1}, 3, v{vT}\ns_lshl_b32 s3, s{sKq}, 11\nv_add_u32 v{vA3}, s3, v{vT}\nv_xor_b32 v{vA3+1}, 64, v{vA3}")
    a(f"s_mov_b32 s3, {hx(2.0**30) if not P['forcefb'] else hx(1.5)}\nv_cmp_nle_f32 vcc, v{OA+8}, s3")
    def fallback():
        passA()
        tk = {i: kread(i) for i in range(3)}
        passB(tk, lambda i, e: None)
        a("s_nop 12")
    rare("s_cbranch_vccnz", fallback, 0, 1)
    a(f"v_rcp_f32 v{vT}, v{OA+8}\nv_mul_f32 v{vT}, v{vT}, v{vIG+1}")
    for e in range(4): a(f"v_pk_mul_f32 {vr(OA+2*e,2)}, {vr(OA+2*e,2)}, {vr(vT,2)} op_sel_hi:[1,0]")
    for e in range(4): a(f"v_cvt_pk_bf16_f32 v{PP+e}, v{OA+2*e}, v{OA+2*e+1}")
    T["o"] = a.vm(f"buffer_store_dwordx4 {vr(PP,4)}, v{vL16}, {srd(SWS)}, s{sOo} offen sc1")
    ts("attn done")
    if P["hchk"] > 8:
        poll_check(T["hp"], vFl, vPo)
        ts("h flags ok")
    while len(tagA) < P["hahead"]: aload()
    a(f"v_lshrrev_b32 v{vT+2}, 2, v{vL16}\nv_and_b32 v{vT+2}, 0x7c, v{vT+2}\ns_lshl_b32 s3, s{sTT3}, 7\ns_add_u32 s3, s3, {OMGL}\nv_add_u32 v{vT+2}, s3, v{vT+2}")
    tom = a.ds(f"ds_read_b32 v{vT+2}, v{vT+2}")
    win = {vA3: 0, vA3+1: 0}
    def prewin(reg, lo, hi):
        cur = win[reg]
        if not (0 <= lo - cur and hi - cur <= 65535-16):
            new = min((lo // 8192) * 8192, 98304); d = new - cur
            a(f"v_add_u32 v{reg}, {d}, v{reg}" if d >= 0 else f"v_subrev_u32 v{reg}, {-d}, v{reg}"); win[reg] = new
    def w3reads(b, buf):
        base = w3slot[b]*BLK
        for r in (vA3, vA3+1): prewin(r, base, base+1024)
        for ct in range(2):
            a.ds(f"ds_read_b64_tr_b16 {vr(buf+4*ct,2)}, v{vA3+ct} offset:{base-win[vA3+ct]}")
            t_ = a.ds(f"ds_read_b64_tr_b16 {vr(buf+4*ct+2,2)}, v{vA3+ct} offset:{base+1024-win[vA3+ct]}")
        return t_
    for e, b2 in enumerate((vB2a, vB2b)):
        d = INIT + 4*e
        a(f"v_lshl_or_b32 v{d}, v{b2}, 16, v{b2}\nv_mov_b32 v{d+1}, 0\nv_mov_b64 {vr(d+2,2)}, 0")
    a(f"v_mov_b32 v{INIT+9}, 0\nv_mov_b64 {vr(INIT+10,2)}, 0")
    a.wait(lg=tom)
    hilo(INIT+8, vT+2, vT)
    a(f"v_mfma_f32_32x32x16_bf16 {vr(A3,16)}, {vr(INIT,4)}, {vr(INIT+8,4)}, 0")
    a(f"v_mfma_f32_32x32x16_bf16 {vr(A3+16,16)}, {vr(INIT+4,4)}, {vr(INIT+8,4)}, 0")
    tr = {}
    AHEAD = 3
    sync = {5: (12, [(13,12),(14,13),(15,14),(16,15),(17,16),(18,17),(19,18),(20,8),(21,9)]),
            9: (None, [(22,0),(23,1),(24,2),(25,3)]),
            13: (18, [(26,4),(27,5),(28,6),(29,7)]),
            19: (23, []), 24: (29, [])}
    pend = []
    def issue_read(b):
        if b in sync:
            landed, ref = sync[b]
            a("s_waitcnt lgkmcnt(0)")
            if landed is not None: a.wait(vm=tagW3[landed])
            a("s_barrier")
            ts(f"X{b}")
            pend.extend(ref)
        tr[b] = w3reads(b, W3F + 8*(b % NB))
    for b in range(AHEAD): issue_read(b)
    vD = 104
    for b in range(30):
        if b + AHEAD < 30: issue_read(b + AHEAD)
        if b == P["opub"]:
            a.wait(vm=T["o"])
            a(f"s_add_u32 s{sHL}, s{sHL}, {FL_O-FL_H}")
            flag_store(sHL, vT)
            ts("o published")
        if b == P["opoll"]:
            a(f"v_add_u32 v{vFl}, {FL_O-FL_H}, v{vFl}")
            T["op"] = poll_issue(vFl, vPo)
        if b == P["ochk"]:
            poll_check(T["op"], vFl, vPo); ts("o flags ok")
        for _ in range(2):
            if (len(tagA) < 22 or b >= P["ochk"]) and len(tagA) < b + P["hahead"] + 1: aload()
        for _ in range(2):
            if pend: dma_w3(*pend.pop(0))
        if b == 20:
            a(f"v_and_b32 v{vT}, 31, v0\nv_lshlrev_b32 v{vT+1}, 8, v{vT}\ns_lshl_b32 s3, s{sW}, 13\ns_add_u32 s3, s3, {RB}\nv_add_u32 v{vT+1}, s3, v{vT+1}")
            a(f"v_and_b32 v{vT}, 7, v0\nv_lshrrev_b32 v{vT+3}, 5, v0\nv_xor_b32 v{vT}, v{vT}, v{vT+3}\nv_lshl_add_u32 v{vD}, v{vT}, 4, v{vT+1}")
            for j in range(1, 4): a(f"v_xor_b32 v{vD+j}, {32*j}, v{vD}")
        if b == 22:
            a(f"v_lshrrev_b32 v{vT}, 3, v0\nv_and_b32 v{vT+1}, 7, v0\nv_lshlrev_b32 v{vT+1}, 1, v{vT+1}\nv_xor_b32 v{vT+1}, v{vT+1}, v{vT}")
            a(f"s_lshl_b32 s3, s{sT}, 11\ns_lshl_b32 s{sT2}, s{sS}, 13\ns_add_u32 s3, s3, s{sT2}\ns_add_u32 s3, s3, {RB}")
            a(f"v_lshlrev_b32 v{vT+2}, 8, v{vT}\nv_lshl_add_u32 v{vT+2}, v{vT+1}, 4, v{vT+2}\nv_add_u32 v{vT+2}, s3, v{vT+2}\nv_xor_b32 v{vT+3}, 16, v{vT+2}")
        if b == 23:
            a(f"s_lshl_b32 s3, s{sR}, 7\ns_lshr_b32 s{sT2}, s{sC}, 3\ns_lshl_b32 s{sT2}, s{sT2}, 6\ns_add_u32 s3, s3, s{sT2}\ns_lshl_b32 s{sT2}, s{sW}, 3\ns_add_u32 s3, s3, s{sT2}\ns_lshl_b32 s3, s3, 10")
            a(f"s_and_b32 s{sT2}, s{sC}, 7\ns_lshl_b32 s{sT2}, s{sT2}, 7\ns_add_u32 s{sOo}, s3, s{sT2}")
            a(f"v_lshlrev_b32 v{vT}, 10, v{vT}\nv_and_b32 v{vT+1}, 0x70, v{vL16}\nv_add_u32 v{vT}, v{vT}, v{vT+1}")
        a.wait(vm=tagA[b], lg=tr[b])
        def mm():
            for ct in range(2):
                a(f"v_mfma_f32_32x32x16_bf16 {vr(A3+16*ct,16)}, {vr(W3F+8*(b%NB)+4*ct,4)}, {vr(HF+4*(b%22),4)}, {vr(A3+16*ct,16)}")
        if b == 21:
            lk = a.newlabel("L_sk"); a(f"s_cmp_ge_u32 s{sKq}, 2\ns_cbranch_scc1 {lk}"); k = a.save()
            mm(); a.label(lk); a.merge(k)
            ts("h gemm done")
        else: mm()
    ts("o gemm done")
    for ct in range(2):
        for j in range(4): a(f"ds_write_b128 v{vD+j}, {vr(A3+16*ct+4*j,4)} offset:{128*ct}")
    a("s_waitcnt lgkmcnt(0)\ns_barrier")
    R0 = 64
    for kq in range(4):
        a(f"ds_read_b128 {vr(R0+8*kq,4)}, v{vT+2} offset:{kq*16384}\nds_read_b128 {vr(R0+8*kq+4,4)}, v{vT+3} offset:{kq*16384}")
    a("s_waitcnt lgkmcnt(4)")
    for e in range(4): a(f"v_pk_add_f32 {vr(R0+2*e,2)}, {vr(R0+2*e,2)}, {vr(R0+8+2*e,2)}")
    a("s_waitcnt lgkmcnt(0)")
    for e in range(4): a(f"v_pk_add_f32 {vr(R0+16+2*e,2)}, {vr(R0+16+2*e,2)}, {vr(R0+24+2*e,2)}")
    for e in range(4): a(f"v_pk_add_f32 {vr(R0+2*e,2)}, {vr(R0+2*e,2)}, {vr(R0+16+2*e,2)}")
    for e in range(4): a(f"v_cvt_pk_bf16_f32 v{R0+8+e}, v{R0+2*e}, v{R0+2*e+1}")
    a(f"buffer_store_dwordx4 {vr(R0+8,4)}, v{vT}, {srd(SOUT)}, s{sOo} offen" + (" sc1" if P["outsc1"] else ""))
    if debug:
        a("s_waitcnt vmcnt(0)")
        ts("end")
        a(f"s_memrealtime s[{sTS}:{sTS+1}]\ns_waitcnt lgkmcnt(0)\nv_writelane_b32 v{vTS}, s{sTS}, 62")
        a(f"v_writelane_b32 v{vTS}, s{sSpin}, 63")
        a(f"s_lshl_b32 s3, s2, 3\ns_add_u32 s3, s3, s{sW}\ns_lshl_b32 s3, s3, 8\ns_add_u32 s3, s3, {TSB}\nv_lshlrev_b32 v{vT}, 2, v0")
        a(f"buffer_store_dword v{vTS}, v{vT}, {srd(SWS)}, s3 offen")
    if P.get("fixed"):
        a(f"s_add_u32 s22, s72, {P['fixed']}")
        a.label("L_dly2")
        a("s_memrealtime s[20:21]\ns_waitcnt lgkmcnt(0)\ns_sub_u32 s23, s22, s20\ns_cmp_gt_i32 s23, 0\ns_cbranch_scc1 L_dly2")
    if P.get("delay"):
        a(f"s_memtime s[20:21]\ns_waitcnt lgkmcnt(0)\ns_add_u32 s22, s20, {P['delay']}")
        a.label("L_dly")
        a("s_memtime s[20:21]\ns_waitcnt lgkmcnt(0)\ns_sub_u32 s23, s22, s20\ns_cmp_gt_i32 s23, 0\ns_cbranch_scc1 L_dly")
    a.label("L_end")
    a("s_endpgm")
    a.raw("L_hot_end:")
    i = 0
    while i < len(tail):
        tail[i](); i += 1
    a.raw(f".set CODE_LAST, L_hot_end - {NAME} - 64")
    a.raw(f""".section .rodata,"a"
.p2align 6
.amdhsa_kernel {NAME}
  .amdhsa_next_free_vgpr 256
  .amdhsa_next_free_sgpr 102
  .amdhsa_accum_offset 256
  .amdhsa_group_segment_fixed_size 0
  .amdhsa_kernarg_size 96
  .amdhsa_user_sgpr_count 2
  .amdhsa_user_sgpr_kernarg_segment_ptr 1
  .amdhsa_system_sgpr_workgroup_id_x 1
.end_amdhsa_kernel""")
    return a.finish()

if __name__ == "__main__":
    import json
    P = json.loads(sys.argv[1]) if len(sys.argv) > 1 else {}
    out = sys.argv[2] if len(sys.argv) > 2 else "gated_mix__sliding_block__mixer_channel_mlp__prompt.s"
    txt, pads = gen(False, P)
    open(out, "w").write(txt)
    txt, pads2 = gen(True, P)
    open(sys.argv[3] if len(sys.argv) > 3 else "dbg.s", "w").write(txt)
    open("dbg_ts.txt", "w").write("\n".join(TSN))
    print("pads", pads, pads2, "nts", len(TSN))
```
